```python
import torch

def _softmax(x, axis=-1):
    return torch.softmax(x, dim=axis)
def _gelu(x):
    return torch.nn.functional.gelu(x, approximate="tanh")
def _silu(x):
    return torch.nn.functional.silu(x)
def _sigmoid(x):
    return torch.sigmoid(x)
def _layernorm(x, axis=-1, eps=1e-5):
    m = x.mean(dim=axis, keepdim=True)
    v = x.var(dim=axis, keepdim=True, unbiased=False)
    return (x - m) / torch.sqrt(v + eps)
def _scatter_add(tgt, idx, src, axis=0):
    return tgt.clone().index_add_(axis, idx, src)
def _segment_sum(src, seg, n):
    out = torch.zeros((n,) + src.shape[1:], dtype=src.dtype)
    return out.index_add_(0, seg, src)
def _pad(x, pw):
    flat = tuple(v for pair in reversed(pw) for v in pair)
    return torch.nn.functional.pad(x, flat)

kernel_name = 'recurrent_scan__mha_block_cached__glu_gated_bilinear__decode'

def setup_inputs():

    _w = (lambda a: (lambda t: t.to(torch.bfloat16) if t.is_floating_point() else t)(torch.as_tensor(a)))
    def _A_setup():
        B, Sq, D = 2, 1, 640
        H, Sk, Dh = 32, 8192, 128
        return {
            "x": _w((lambda *s: torch.randn(*s, dtype=torch.bfloat16) * 0.4)(B, Sq, D)),
            "k_cache": _w((lambda *s: torch.randn(*s, dtype=torch.bfloat16) * 1.6)(B, H, Sk, Dh)),
            "v_cache": _w((lambda *s: torch.randn(*s, dtype=torch.bfloat16) * 1.6)(B, H, Sk, Dh)),
            "wq": _w((lambda *s: torch.randn(*s, dtype=torch.bfloat16) * 1.6)(D, H * Dh) * (D ** -0.5)),
            "wo": _w((lambda *s: torch.randn(*s, dtype=torch.bfloat16) * 1.6)(H * Dh, D) * ((H * Dh) ** -0.5)),
        }
    _A_in = _A_setup()

    def _B_setup():
        B, S, D, F = 2, 1, 640, 1728
        return {
            "x": _w((lambda *s: torch.randn(*s, dtype=torch.bfloat16) * 0.4)(B, S, D)),
            "w_gate": _w((lambda *s: torch.randn(*s, dtype=torch.bfloat16) * 1.6)(D, F) * (D ** -0.5)),
            "w_up": _w((lambda *s: torch.randn(*s, dtype=torch.bfloat16) * 1.6)(D, F) * (D ** -0.5)),
            "w_down": _w((lambda *s: torch.randn(*s, dtype=torch.bfloat16) * 1.6)(F, D) * (F ** -0.5)),
        }
    _B_in = _B_setup()

    return {
        "A_x": _A_in["x"],
        "A_k_cache": _A_in["k_cache"],
        "A_v_cache": _A_in["v_cache"],
        "A_wq": _A_in["wq"],
        "A_wo": _A_in["wo"],
        "B_x": _B_in["x"],
        "B_w_gate": _B_in["w_gate"],
        "B_w_up": _B_in["w_up"],
        "B_w_down": _B_in["w_down"],
    }

def reference(A_x, A_k_cache, A_v_cache, A_wq, A_wo, B_x, B_w_gate, B_w_up, B_w_down):
    def _A_ref(x, k_cache, v_cache, wq, wo):
        B, Sq, D = x.shape
        H, Dh = 32, 128
        q = (lambda x, *d: x.permute(*d))((x @ wq).reshape(B, Sq, H, Dh), 0, 2, 1, 3)
        scores = torch.einsum("bhqd,bhkd->bhqk", q, k_cache) * (Dh ** -0.5)
        p = _softmax(scores, axis=-1)
        o = torch.einsum("bhqk,bhkd->bhqd", p, v_cache)
        return (lambda x, *d: x.permute(*d))(o, 0, 2, 1, 3).reshape(B, Sq, H * Dh) @ wo

    def _B_ref(x, w_gate, w_up, w_down):
        g = torch.einsum("bsd,df->bsf", x, w_gate)
        u = torch.einsum("bsd,df->bsf", x, w_up)
        h = g * u
        return torch.einsum("bsf,fd->bsd", h, w_down)

    x = A_x
    xn = _layernorm(x, axis=-1)
    s = _A_ref(xn, A_k_cache, A_v_cache, A_wq, A_wo)
    g = _silu(_B_ref(xn, B_w_gate, B_w_up, B_w_down))
    return x + s * g
```

```python
import re, sys
TRANS = ("v_exp_f32","v_log_f32","v_rcp_f32","v_rsq_f32","v_sqrt_f32","v_sin_f32","v_cos_f32")
def regs(tok):
    tok=tok.strip()
    m=re.fullmatch(r"-?(?:abs\()?([vsa])(\d+)\)?",tok)
    if m: return {(m.group(1),int(m.group(2)))}
    m=re.fullmatch(r"([vsa])\[(\d+):(\d+)\]",tok)
    if m: return {(m.group(1),i) for i in range(int(m.group(2)),int(m.group(3))+1)}
    if tok in("vcc",): return {("s","vcc")}
    if tok=="exec": return {("s","exec")}
    if tok=="m0": return {("s","m0")}
    return set()
class I: pass
def parse(line):
    line=line.split(";")[0].strip()
    if not line or line.endswith(":") or line.startswith("."): return None
    parts=line.split(None,1); op=parts[0]; rest=parts[1] if len(parts)>1 else ""
    ops=[o.strip() for o in re.split(r",(?![^\[]*\])",rest)] if rest else []
    mods=""
    if ops:
        last=ops[-1].split(None,1)
        if len(last)>1: ops[-1]=last[0]; mods=last[1]
    i=I(); i.op=op; i.ops=ops; i.mods=mods; i.text=line
    i.valu=op.startswith("v_") and not op.startswith("v_mfma")
    i.mfma=op.startswith("v_mfma")
    i.dpp=("_dpp" in op) or ("row_" in mods) or ("quad_perm" in mods)
    i.trans=op.replace("_e32","").replace("_e64","") in TRANS
    i.dot=op.startswith("v_dot")
    i.vmem=op.startswith("buffer_") or op.startswith("global_")
    i.ds=op.startswith("ds_")
    i.perml=op.startswith("v_permlane")
    i.rdl=op.startswith("v_readlane") or op.startswith("v_readfirstlane")
    i.dst=set(); i.src=set()
    R=[regs(o) for o in ops]
    if op.startswith("s_nop"): i.ws=int(ops[0],0)+1
    else: i.ws=1
    if i.valu or i.mfma:
        if op.startswith("v_cmp"): i.dst=R[0]; i.src=set().union(*R[1:])
        elif i.perml: i.dst=R[0]|R[1]; i.src=R[0]|R[1]
        else:
            i.dst=R[0] if R else set(); i.src=set().union(*R[1:]) if len(R)>1 else set()
            if op.startswith(("v_fmac","v_dot2c","v_writelane")) or (i.dpp): i.src|=R[0]
            if op.startswith("v_cndmask") and len(ops)==3: i.src|={("s","vcc")}
            if "_co_" in op: i.dst|=R[1]
        if i.mfma: i.srcC=R[3]; i.srcAB=R[1]|R[2]
    elif i.vmem:
        st = "store" in op or "atomic" in op
        lds = " lds" in (" "+mods)
        if lds: i.src=set().union(*R)|{("s","m0")}
        elif st: i.src=set().union(*R); i.data=R[0]
        else: i.dst=R[0]; i.src=set().union(*R[1:])
        if "atomic" in op and "sc0" in mods: i.dst=R[0]
        i.st=st and not lds
    elif i.ds:
        if op.startswith(("ds_read","ds_bpermute","ds_permute","ds_swizzle")) or "_rtn" in op: i.dst=R[0]; i.src=set().union(*R[1:])
        else: i.src=set().union(*R)
    elif op.startswith("s_"):
        if op.startswith(("s_cmp","s_cbranch","s_branch","s_waitcnt","s_barrier","s_nop","s_sleep","s_setprio","s_endpgm")): i.src=set().union(*R) if R else set()
        else: i.dst=R[0] if R else set(); i.src=set().union(*R[1:]) if len(R)>1 else set()
    return i
def check(seq, out):
    for k,c in enumerate(seq):
        dist=0
        for p in reversed(seq[max(0,k-24):k]):
            def need(n,why):
                if dist<n: out.add(f"{why}: need {n} have {dist}: [{p.text}] -> [{c.text}]")
            vd={r for r in p.dst if r[0] in "va"}; sd={r for r in p.dst if r[0]=="s"}
            if p.valu:
                if c.valu and c.dpp and vd & (regs(c.ops[1]) if len(c.ops)>1 else set()): need(2,"VALU->DPP")
                if c.mfma and vd & c.src: need(2,"VALU->MFMA")
                if c.perml and vd & c.src: need(2,"VALU->permlane")
                if c.rdl and vd & c.src: need(1,"VALU->readlane")
                if p.trans and c.valu and not c.trans and vd & c.src: need(1,"trans->VALU")
                if p.trans and (c.ds or c.vmem) and vd & c.src: need(1,"trans->mem(?)")
                if c.valu and sd & c.src: need(2,"VALU sgpr->VALU")
                if c.vmem and sd & c.src: need(5,"VALU sgpr->VMEM")
                if p.dot and (c.valu or c.mfma or c.ds or c.vmem) and (vd & (c.src|c.dst)):
                    if c.dot and c.op==p.op and not (vd & (regs(c.ops[1])|regs(c.ops[2]))): pass
                    else: need(3,"dot->other")
            if p.mfma:
                if c.mfma:
                    if vd & c.srcAB: need(8,"MFMA D->AB")
                    if vd & c.srcC and c.srcC!=vd: need(6,"MFMA D->C partial")
                elif (c.valu or c.vmem or c.ds) and vd & (c.src|c.dst): need(8,"MFMA D->use")
                if c.valu and p.srcC & c.dst:
                    need(3,"MFMA srcC WAR")
            if p.vmem and getattr(p,"st",False) and len(p.data)>=3 and c.valu and p.data & c.dst: need(2,"store data WAR")
            if p.op.startswith("s_") and ("s","m0") in p.dst and c.vmem and ("s","m0") in c.src: need(1,"m0->ldsdma")
            dist+=p.ws
def lint(text):
    lines=text.split("\n"); seq=[]; labels={}; out=set()
    for ln in lines:
        s=ln.split(";")[0].strip()
        if s.endswith(":") and not s.startswith("."): labels[s[:-1]]=len(seq); continue
        i=parse(ln)
        if i: seq.append(i)
    check(seq,out)
    for k,i in enumerate(seq):
        if i.op.startswith(("s_cbranch","s_branch")) and i.ops and i.ops[0] in labels:
            t=labels[i.ops[0]]
            check(seq[max(0,k-24):k+1]+seq[t:t+24],out)
    return sorted(out)
if __name__=="__main__":
    r=lint(open(sys.argv[1]).read())
    print("\n".join(r) if r else "lint clean")
```

```python
import sys
KNAME = "recurrent_scan__mha_block_cached__glu_gated_bilinear__decode_kernel"
HEADER = open("recurrent_scan__mha_block_cached__glu_gated_bilinear__decode.s.ref").read().split("; Override launch")[0]

WS_PA = 0x00000
WS_OP = 0x40000
WS_G = 0x70000
WS_Y = 0xA0000
WS_ST = 0x100000
WS_SIZE = 0x200000
L_QP = 0x0000
L_OP = 0x0800
L_ML = 0x1000
L_CNT = 0x1040
L_HB = 0x1100
L_SC = 0x1400
L_WO = 0x5400
L_WD = L_WO + 21504
L_END = L_WD + 11264
LOG2E = 0x3FB8AA3B
SCALE = 0x3DB504F3
INV640 = 0x3ACCCCCD
EPS = 0x3727C5AC


class Gen:
    def __init__(self, stamps=False, pattern="g4b4", wq_flags="", aux_early=False, kvflags="nt", mix=(5, 2)):
        self.L = []
        self.stamps = stamps
        self.pattern = pattern
        self.wq_flags = wq_flags
        self.aux_early = aux_early
        self.kvflags = kvflags
        self.mix = mix
        self.nst = 0

    def A(self, s):
        self.L.append("    " + s if not s.endswith(":") else s)

    def nop(self, n):
        while n > 0:
            k = min(n, 16)
            self.A(f"s_nop {k-1}")
            n -= k

    def stamp(self, idx):
        if self.stamps:
            self.A(f"s_memrealtime s[{72+2*idx}:{73+2*idx}]")

    def setexec(self, lo, hi):
        self.A(f"s_mov_b32 exec_lo, {lo:#x}")
        self.A(f"s_mov_b32 exec_hi, {hi:#x}")

    def srd(self, d, p, size):
        self.A(f"s_mov_b32 s{d}, s{p}")
        self.A(f"s_and_b32 s{d+1}, s{p+1}, 0xffff")
        self.A(f"s_mov_b32 s{d+2}, {size:#x}")
        self.A(f"s_mov_b32 s{d+3}, 0x20000")

    def wave_reduce(self, op, r, t):
        A = self.A
        for sh in (8, 4, 2, 1):
            self.nop(2)
            A(f"{op}_dpp v{r}, v{r}, v{r} row_ror:{sh} row_mask:0xf bank_mask:0xf")
        for sw in ("v_permlane16_swap_b32", "v_permlane32_swap_b32"):
            A(f"v_mov_b32 v{t}, v{r}")
            self.nop(2)
            A(f"{sw} v{r}, v{t}")
            self.nop(1)
            A(f"{op} v{r}, v{r}, v{t}")

    def bf16r(self, d, s):
        self.A(f"v_cvt_pk_bf16_f32 v{d}, v{s}, v{s}")
        self.A(f"v_and_b32 v{d}, 0xffff0000, v{d}")

    def unpack10(self, raw, out):
        for e in range(10):
            if e % 2 == 0:
                self.A(f"v_lshlrev_b32 v{out+e}, 16, v{raw+e//2}")
            else:
                self.A(f"v_and_b32 v{out+e}, 0xffff0000, v{raw+e//2}")

    def ln_stats(self, x, mb, rs, t0, t1):
        A = self.A
        A(f"v_add_f32 v{mb}, v{x}, v{x+1}")
        for e in range(2, 10):
            A(f"v_add_f32 v{mb}, v{mb}, v{x+e}")
        self.wave_reduce("v_add_f32", mb, t0)
        A(f"v_mul_f32 v{mb}, {INV640:#x}, v{mb}")
        A(f"v_sub_f32 v{t0}, v{x}, v{mb}")
        A(f"v_mul_f32 v{rs}, v{t0}, v{t0}")
        for e in range(1, 10):
            A(f"v_sub_f32 v{t0}, v{x+e}, v{mb}")
            A(f"v_fmac_f32 v{rs}, v{t0}, v{t0}")
        self.wave_reduce("v_add_f32", rs, t0)
        A(f"v_mul_f32 v{rs}, {INV640:#x}, v{rs}")
        self.bf16r(mb, mb)
        self.bf16r(rs, rs)
        A(f"v_add_f32 v{rs}, {EPS:#x}, v{rs}")
        self.bf16r(rs, rs)
        A(f"v_sqrt_f32 v{rs}, v{rs}")
        self.nop(1)
        self.bf16r(rs, rs)
        A(f"v_rcp_f32 v{rs}, v{rs}")
        self.nop(1)

    def ln_apply(self, x, mb, rs):
        A = self.A
        for e in range(10):
            A(f"v_sub_f32 v{x+e}, v{x+e}, v{mb}")
        for e in range(10):
            self.bf16r(x + e, x + e)
        for e in range(10):
            A(f"v_mul_f32 v{x+e}, v{x+e}, v{rs}")
        for e in range(10):
            A(f"v_cvt_pk_bf16_f32 v{x+e}, v{x+e}, v{x+e}")

    def dump_stamps(self, nst):
        if not self.stamps:
            return
        A = self.A
        A("s_waitcnt lgkmcnt(0)")
        self.srd(56, 26, WS_SIZE)
        A("s_mul_i32 s64, s2, 5")
        A("s_add_u32 s64, s64, s60")
        A("s_lshl_b32 s64, s64, 6")
        A(f"s_add_u32 s64, s64, {WS_ST:#x}")
        A("s_mov_b64 exec, 1")
        A("v_mov_b32 v1, s64")
        for i in range(nst):
            A(f"v_mov_b32 v{4+i}, s{72+2*i}")
        for i in range(nst, 15):
            A(f"v_mov_b32 v{4+i}, 0")
        A("s_getreg_b32 s65, hwreg(HW_REG_XCC_ID)")
        A("v_mov_b32 v19, s65")
        for q in range(4):
            A(f"buffer_store_dwordx4 v[{4+4*q}:{7+4*q}], v1, s[56:59], 0 offen offset:{16*q}")

    def build(self):
        A = self.A
        NB = 8
        A(f"s_cmp_ge_u32 s2, 256")
        A("s_cbranch_scc1 L_end")
        self.stamp(0)
        A("s_load_dwordx16 s[4:19], s[0:1], 0")
        A("s_load_dwordx8 s[20:27], s[0:1], 64")
        A("v_lshrrev_b32 v1, 6, v0")
        A("v_and_b32 v0, 63, v0")
        A("v_readfirstlane_b32 s60, v1")
        A("s_and_b32 s61, s2, 7")
        A("s_lshl_b32 s61, s61, 2")
        A("s_bfe_u32 s64, s2, 0x20003")
        A("s_add_u32 s61, s61, s64")
        A("s_lshr_b32 s62, s2, 5")
        A("s_lshr_b32 s63, s2, 7")
        A("s_cmp_eq_u32 s60, 0")
        A("s_cbranch_scc1 L_aux")
        self.stream(NB)
        A("L_aux:")
        self.aux()
        A("L_end:")
        A("s_endpgm")

    def stream(self, NB):
        A = self.A
        SA, SB = 128, 192
        XD = 20
        A("s_sub_u32 s64, s60, 1")
        A("v_lshrrev_b32 v30, 4, v0")
        A("v_and_b32 v31, 15, v0")
        A("s_lshl_b32 s65, s64, 2")
        A("v_add_u32 v3, s65, v31")
        A("v_and_b32 v3, 15, v3")
        A("v_mul_u32_u24 v3, 20, v3")
        A("v_mul_u32_u24 v2, 320, v30")
        A("s_mul_i32 s66, s63, 1280")
        A("v_add3_u32 v3, v3, v2, s66")
        A("s_mul_i32 s65, s64, %d" % (40 * 8192))
        A("s_lshl_b32 s66, s61, 8")
        A("s_add_u32 s65, s65, s66")
        A("s_mov_b32 s66, %d" % (160 * 8192))
        A("v_mul_lo_u32 v2, v30, s66")
        A("v_lshl_add_u32 v2, v31, 4, v2")
        A("v_add_u32 v2, s65, v2")
        A("s_lshl_b32 s65, s63, 5")
        A("s_add_u32 s65, s65, s61")
        A("s_lshl_b32 s65, s65, 21")
        A("s_and_b32 s66, s62, 3")
        A("s_lshl_b32 s66, s66, 2")
        A("s_add_u32 s66, s66, s64")
        if self.pattern == "g4b4":
            A("s_lshl_b32 s66, s66, 12")
            SUBSTEP = 65536
        elif self.pattern == "contig":
            A("s_lshl_b32 s66, s66, 17")
            SUBSTEP = 4096
        else:
            raise ValueError
        A("s_add_u32 s65, s65, s66")
        A("v_lshlrev_b32 v1, 4, v0")
        A("v_add_u32 v1, s65, v1")
        A("s_waitcnt lgkmcnt(0)")
        self.srd(28, 4, 2560)
        A("buffer_load_dwordx4 v[8:11], v3, s[28:31], 0 offen")
        A("buffer_load_dword v12, v3, s[28:31], 0 offen offset:16")
        self.srd(36, 10, 640 * 4096 * 2)
        self.srd(32, 6, 0x8000000)
        A("s_mov_b32 s67, 0")
        A("s_mov_b32 s68, 0")

        def wqreg(n):
            return 32 + 4 * n if n < 24 else SB + 4 * (n - 24)

        issued = ["x0", "x1"]

        def kload(slot, r):
            reg = slot + 4 * r
            A(f"buffer_load_dwordx4 v[{reg}:{reg+3}], v1, s[32:35], s68 offen offset:{(r&3)*1024} {self.kvflags}")
            if r & 3 == 3:
                A(f"s_add_u32 s68, s68, {SUBSTEP}")

        a, b_ = self.mix
        n = 0
        r = 0
        while n < 40 or r < 16:
            for _ in range(a):
                if n < 40:
                    reg = wqreg(n)
                    A(f"buffer_load_dwordx4 v[{reg}:{reg+3}], v2, s[36:39], s67 offen {self.wq_flags}")
                    A("s_add_u32 s67, s67, 8192")
                    issued.append(f"w{n}")
                    n += 1
            for _ in range(b_):
                if r < 16:
                    kload(SA, r)
                    issued.append(f"a{r}")
                    r += 1
        self.stamp(1)
        A("v_and_b32 v16, 1, v31")
        A("v_lshlrev_b32 v16, 4, v16")
        A("v_mov_b32 v17, 0xffff")
        A("v_lshlrev_b32 v16, v16, v17")
        A("v_lshrrev_b32 v17, 1, v31")
        for k in range(4):
            A(f"v_cmp_eq_u32 vcc, {k}, v17")
            self.nop(2)
            A(f"v_cndmask_b32 v{4+k}, 0, v16, vcc")
        A("s_mov_b32 s40, 0xcccccccc")
        A("s_mov_b32 s41, 0xcccccccc")
        A("s_mov_b32 s42, 0xaaaaaaaa")
        A("s_mov_b32 s43, 0xaaaaaaaa")

        def wait_for(tag):
            A(f"s_waitcnt vmcnt({len(issued)-1-issued.index(tag)})")

        wait_for("x1")
        self.stamp(2)
        self.unpack10(8, XD)
        self.ln_stats(XD, 13, 14, 15, 16)
        self.ln_apply(XD, 13, 14)
        self.nop(2)

        def mkA(aset, src, lane):
            for k in range(4):
                A(f"v_and_b32_dpp v{aset+k}, v{src}, v{4+k} row_newbcast:{lane} row_mask:0xf bank_mask:0xf")

        mkA(8, XD + 0, 0)
        for n in range(40):
            cur = 8 + 4 * (n & 1)
            if n + 1 < 40:
                mkA(8 + 4 * ((n + 1) & 1), XD + (n + 1) % 10, (n + 1) // 10)
            else:
                self.nop(2)
            wait_for(f"w{n}")
            reg = wqreg(n)
            c = "0" if n == 0 else "v[16:19]"
            A(f"v_mfma_f32_16x16x32_bf16 v[16:19], v[{cur}:{cur+3}], v[{reg}:{reg+3}], {c}")
            if n >= 24:
                kload(SB, n - 24)
                issued.append(f"b{n-24}")
        self.stamp(3)
        A("v_lshlrev_b32 v3, 5, v31")
        A("v_lshl_add_u32 v3, v30, 4, v3")
        A("s_lshl_b32 s65, s64, 9")
        A("v_add_u32 v3, s65, v3")
        self.nop(5)
        self.setexec(0xffffffff, 0)
        A(f"ds_write_b128 v3, v[16:19] offset:{L_QP}")
        A("s_mov_b64 exec, -1")
        A("s_waitcnt lgkmcnt(0)")
        A("s_barrier")
        A("v_lshlrev_b32 v2, 5, v31")
        for w in range(4):
            A(f"ds_read_b128 v[{32+8*w}:{35+8*w}], v2 offset:{L_QP+512*w}")
            A(f"ds_read_b128 v[{36+8*w}:{39+8*w}], v2 offset:{L_QP+512*w+16}")
        A("s_lshl_b32 s65, s64, 12")
        A("v_lshlrev_b32 v29, 2, v0")
        A("v_add_u32 v29, s65, v29")
        A("v_mov_b32 v24, 0xff800000")
        A("v_mov_b32 v25, 0")
        A("s_waitcnt lgkmcnt(0)")
        for e in range(8):
            A(f"v_add_f32 v{32+e}, v{32+e}, v{40+e}")
            A(f"v_add_f32 v{48+e}, v{48+e}, v{56+e}")
        for e in range(8):
            A(f"v_add_f32 v{32+e}, v{32+e}, v{48+e}")
        for k in range(4):
            A(f"v_cvt_pk_bf16_f32 v{20+k}, v{32+2*k}, v{33+2*k}")
        self.stamp(4)
        A("s_mov_b32 s69, 2")
        A("v_mov_b32 v28, v29")
        P = 32

        def switch_stream():
            lab = f"L_sw{self.nst}"
            self.nst += 1
            A(f"s_cmp_lg_u32 s69, {NB}")
            A(f"s_cbranch_scc1 {lab}")
            A("s_mov_b32 s32, s8")
            A("s_and_b32 s33, s9, 0xffff")
            A("s_mov_b32 s68, 0")
            A(f"{lab}:")
            A("s_add_u32 s69, s69, 1")

        def kblock(slot):
            switch_stream()
            for r in range(16):
                reg = slot + 4 * r
                A("s_waitcnt vmcnt(31)")
                A(f"v_dot2_f32_bf16 v{P+r}, v{reg}, v20, 0")
                for k in range(1, 4):
                    A(f"v_dot2_f32_bf16 v{P+r}, v{reg+k}, v{20+k}, v{P+r}")
                kload(slot, r)
            for r in range(8):
                A(f"v_add_f32_dpp v{P+r}, v{P+r}, v{P+r} row_ror:8 row_mask:0xf bank_mask:0x3")
                A(f"v_add_f32_dpp v{P+r}, v{P+r+8}, v{P+r+8} row_ror:8 row_mask:0xf bank_mask:0xc")
            for r in range(4):
                A(f"v_add_f32_dpp v{P+r}, v{P+r}, v{P+r} row_shl:4 row_mask:0xf bank_mask:0x5")
                A(f"v_add_f32_dpp v{P+r}, v{P+r+4}, v{P+r+4} row_shr:4 row_mask:0xf bank_mask:0xa")
            self.nop(1)
            for r in range(4):
                A(f"v_add_f32_dpp v{P+r}, v{P+r}, v{P+r} quad_perm:[2,3,0,1] row_mask:0xf bank_mask:0xf")
            A(f"v_cndmask_b32 v{P}, v{P}, v{P+2}, s[40:41]")
            A(f"v_cndmask_b32 v{P+1}, v{P+1}, v{P+3}, s[40:41]")
            self.nop(1)
            A(f"v_add_f32_dpp v{P}, v{P}, v{P} quad_perm:[1,0,3,2] row_mask:0xf bank_mask:0xf")
            A(f"v_add_f32_dpp v{P+1}, v{P+1}, v{P+1} quad_perm:[1,0,3,2] row_mask:0xf bank_mask:0xf")
            A(f"v_cndmask_b32 v{P}, v{P}, v{P+1}, s[42:43]")
            self.bf16r(P, P)
            A(f"v_mul_f32 v{P}, {SCALE:#x}, v{P}")
            self.bf16r(P, P)
            A(f"v_max_f32 v24, v24, v{P}")
            A(f"ds_write_b32 v28, v{P} offset:{L_SC}")
            A("v_add_u32 v28, 256, v28")

        A(f"s_mov_b32 s70, {NB//2}")
        A("L_kloop:")
        kblock(SA)
        kblock(SB)
        A("s_sub_u32 s70, s70, 1")
        A("s_cmp_lg_u32 s70, 0")
        A("s_cbranch_scc1 L_kloop")
        self.stamp(5)
        A("s_waitcnt lgkmcnt(0)")
        A(f"ds_read_b32 v27, v29 offset:{L_SC}")
        self.wave_reduce("v_max_f32", 24, 30)
        A(f"v_mul_f32 v28, {LOG2E:#x}, v24")
        A("v_sub_f32 v28, 0, v28")
        A(f"s_mov_b32 s71, {LOG2E:#x}")
        for k in range(4):
            A(f"v_mov_b32 v{16+k}, 0")

        def mkP():
            A("s_waitcnt lgkmcnt(0)")
            A("v_fma_f32 v30, v27, s71, v28")
            A("v_add_u32 v29, 256, v29")
            A("v_exp_f32 v30, v30")
            A(f"ds_read_b32 v27, v29 offset:{L_SC}")
            A("v_add_f32 v25, v25, v30")
            A("v_cvt_pk_bf16_f32 v26, v30, v30")

        def vblock(slot):
            lab = f"L_sw{self.nst}"
            self.nst += 1
            A(f"s_cmp_lg_u32 s69, {2*NB}")
            A(f"s_cbranch_scc1 {lab}")
            A("s_mov_b32 s34, 0")
            A(f"{lab}:")
            A("s_add_u32 s69, s69, 1")
            mkP()
            self.nop(2)
            mkA(8, 26, 0)
            for r in range(16):
                cur = 8 + 4 * (r & 1)
                if r + 1 < 16:
                    mkA(8 + 4 * ((r + 1) & 1), 26, r + 1)
                else:
                    self.nop(1)
                reg = slot + 4 * r
                A("s_waitcnt vmcnt(31)")
                A(f"v_mfma_f32_16x16x32_bf16 v[16:19], v[{cur}:{cur+3}], v[{reg}:{reg+3}], v[16:19]")
                kload(slot, r)

        A(f"s_mov_b32 s70, {NB//2}")
        A("L_vloop:")
        vblock(SA)
        vblock(SB)
        A("s_sub_u32 s70, s70, 1")
        A("s_cmp_lg_u32 s70, 0")
        A("s_cbranch_scc1 L_vloop")
        self.stamp(6)
        self.wave_reduce("v_add_f32", 25, 30)
        self.setexec(0xffffffff, 0)
        A(f"ds_write_b128 v3, v[16:19] offset:{L_OP}")
        A("s_mov_b64 exec, 1")
        A("s_lshl_b32 s65, s64, 3")
        A("v_mov_b32 v2, s65")
        A(f"ds_write_b64 v2, v[24:25] offset:{L_ML}")
        A("v_mov_b32 v2, 0")
        A("v_mov_b32 v30, 1")
        A("s_waitcnt lgkmcnt(0)")
        A(f"ds_add_u32 v2, v30 offset:{L_CNT}")
        self.stamp(7)
        self.dump_stamps(8)
        A("s_endpgm")

    def aux(self):
        A = self.A
        A("s_setprio 3")
        A("s_mov_b32 s98, 0x40000")
        A("s_mov_b32 s99, 0x400000")
        A("v_mov_b32 v1, 0")
        A(f"ds_write_b32 v1, v1 offset:{L_CNT}")
        A("v_lshrrev_b32 v2, 4, v0")
        A("v_and_b32 v3, 15, v0")
        A("s_waitcnt lgkmcnt(0)")
        if not self.aux_early:
            A("s_barrier")
        self.srd(28, 4, 2560)
        self.srd(32, 16, 640 * 1728 * 2)
        self.srd(36, 18, 640 * 1728 * 2)
        self.srd(40, 12, 4096 * 640 * 2)
        self.srd(44, 20, 1728 * 640 * 2)
        self.srd(48, 22, 2560)
        self.srd(52, 24, 256)
        self.srd(56, 26, WS_SIZE)
        self.stamp(1)
        for k in range(4):
            A(f"v_mov_b32 v{8+k}, -1")
        A("s_lshl_b32 s64, s61, 3")
        A("s_add_u32 s64, s64, s62")
        A("s_mul_i32 s64, s64, 640")
        A(f"s_add_u32 s64, s64, {WS_OP:#x}")
        A("v_lshlrev_b32 v4, 4, v0")
        A("v_add_u32 v4, s64, v4")
        self.setexec(0xffffffff, 1)
        A("buffer_store_dwordx4 v[8:11], v4, s[56:59], 0 offen sc1")
        A("s_mov_b64 exec, -1")
        A("s_lshl_b32 s64, s62, 6")
        A("s_add_u32 s64, s64, s61")
        A("s_mul_i32 s64, s64, 384")
        A("v_and_b32 v5, 1, v0")
        A("v_mul_u32_u24 v5, 12288, v5")
        A("v_lshl_add_u32 v5, v2, 4, v5")
        A("v_add_u32 v5, s64, v5")
        A("s_mov_b32 s66, 0x00030003")
        A("s_mov_b32 s67, 0x00030003")
        A(f"s_mov_b32 s68, {WS_G:#x}")
        A(f"s_mov_b32 s69, {WS_Y:#x}")
        A("s_mov_b64 exec, s[66:67]")
        for t in range(5):
            A(f"buffer_store_dwordx4 v[8:11], v5, s[56:59], s68 offen offset:{64*t} sc1")
            A(f"buffer_store_dwordx4 v[8:11], v5, s[56:59], s69 offen offset:{64*t} sc1")
        A("s_mov_b64 exec, -1")
        A("s_cmp_ge_u32 s2, 216")
        A("s_cbranch_scc1 L_noA")
        A("s_mul_i32 s64, s2, 2428")
        A("s_lshr_b32 s64, s64, 16")
        A("s_mul_i32 s65, s64, 27")
        A("s_sub_u32 s65, s2, s65")
        A("v_mul_u32_u24 v6, 20, v0")
        A("buffer_load_dwordx4 v[12:15], v6, s[28:31], 0 offen")
        A("buffer_load_dword v16, v6, s[28:31], 0 offen offset:16")
        A("buffer_load_dwordx4 v[20:23], v6, s[28:31], 0 offen offset:1280")
        A("buffer_load_dword v24, v6, s[28:31], 0 offen offset:1296")
        A("v_lshrrev_b32 v7, 3, v0")
        A("v_mul_u32_u24 v6, 20, v7")
        A("s_mul_i32 s70, s64, 160")
        A("v_add_u32 v6, s70, v6")
        A("buffer_load_dwordx4 v[28:31], v6, s[28:31], 0 offen")
        A("buffer_load_dword v32, v6, s[28:31], 0 offen offset:16")
        A("buffer_load_dwordx4 v[36:39], v6, s[28:31], 0 offen offset:1280")
        A("buffer_load_dword v40, v6, s[28:31], 0 offen offset:1296")
        A("v_mul_u32_u24 v6, 34560, v7")
        A("v_and_b32 v7, 7, v0")
        A("v_lshl_add_u32 v6, v7, 4, v6")
        A("s_mul_i32 s70, s64, %d" % (80 * 3456))
        A("s_lshl_b32 s71, s65, 7")
        A("s_add_u32 s70, s70, s71")
        A("v_add_u32 v6, s70, v6")
        A("s_mov_b32 s70, 0")
        WG0, WU0 = 128, 168
        for r in range(10):
            A(f"buffer_load_dwordx4 v[{WG0+4*r}:{WG0+4*r+3}], v6, s[32:35], s70 offen nt")
            A(f"buffer_load_dwordx4 v[{WU0+4*r}:{WU0+4*r+3}], v6, s[36:39], s70 offen nt")
            A("s_add_u32 s70, s70, 3456")
        if self.aux_early:
            A("s_barrier")
        A("v_and_b32 v44, 1, v3")
        A("v_lshlrev_b32 v44, 4, v44")
        A("v_mov_b32 v45, 0xffff")
        A("v_lshlrev_b32 v44, v44, v45")
        A("v_bfe_u32 v45, v3, 1, 2")
        for k in range(4):
            A(f"v_cmp_eq_u32 vcc, {k}, v45")
            self.nop(2)
            A(f"v_cndmask_b32 v{48+k}, 0, v44, vcc")
        A("s_waitcnt vmcnt(20)")
        X0, X1 = 60, 70
        for (raw, rawA, X) in ((12, 28, X0), (20, 36, X1)):
            self.unpack10(raw, 80)
            self.ln_stats(80, 52, 53, 54, 55)
            self.unpack10(rawA, X)
            self.ln_apply(X, 52, 53)
        D = {(0, 0): 96, (0, 1): 100, (1, 0): 104, (1, 1): 108}
        for r in range(10):
            for b, X in ((0, X0), (1, X1)):
                for k in range(4):
                    A(f"v_and_b32 v{112+4*b+k}, v{X+r}, v{48+k}")
            A(f"s_waitcnt vmcnt({18-2*r})")
            self.nop(1)
            for b in range(2):
                for mat, W in ((0, WG0), (1, WU0)):
                    d = D[(b, mat)]
                    c = "0" if r == 0 else f"v[{d}:{d+3}]"
                    A(f"v_mfma_f32_16x16x32_bf16 v[{d}:{d+3}], v[{112+4*b}:{115+4*b}], v[{W+4*r}:{W+4*r+3}], {c}")
        A("v_add_u32 v6, 40, v0")
        A("v_and_b32 v6, 63, v6")
        A("v_lshlrev_b32 v6, 2, v6")
        self.nop(8)
        for i in range(16):
            A(f"ds_bpermute_b32 v{112+i}, v6, v{96+i}")
        A("s_mul_i32 s70, s64, %d" % (4 * 6912))
        A("s_lshl_b32 s71, s65, 8")
        A("s_add_u32 s70, s70, s71")
        A("v_lshlrev_b32 v6, 5, v3")
        A("v_lshl_add_u32 v6, v2, 4, v6")
        A("v_add_u32 v6, s70, v6")
        A("s_waitcnt lgkmcnt(0)")
        for i in range(16):
            A(f"v_add_f32 v{96+i}, v{96+i}, v{112+i}")
        self.setexec(0x00ff00ff, 0)
        for b in range(2):
            for mat in range(2):
                d = D[(b, mat)]
                A(f"s_mov_b32 s70, {WS_PA + (b*2+mat)*6912}")
                A(f"buffer_store_dwordx4 v[{d}:{d+3}], v6, s[56:59], s70 offen sc1")
        A("s_mov_b64 exec, -1")
        if self.aux_early:
            A("s_branch L_doneA")
        A("L_noA:")
        if self.aux_early:
            A("s_barrier")
            A("L_doneA:")
        A("s_waitcnt vmcnt(0)")
        A("s_mov_b64 exec, 1")
        A("v_mov_b32 v6, 1")
        A("buffer_atomic_add v6, off, s[52:55], 0 sc1")
        A("s_mov_b64 exec, -1")
        self.stamp(2)
        A("v_mul_u32_u24 v6, 205, v0")
        A("v_lshrrev_b32 v6, 11, v6")
        A("v_mul_u32_u24 v7, 10, v6")
        A("v_sub_u32 v7, v0, v7")
        A("v_mul_u32_u24 v6, 1280, v6")
        A("v_lshl_add_u32 v6, v7, 4, v6")
        A("s_mul_i32 s64, s62, 160")
        A("v_add_u32 v6, s64, v6")
        A("s_mul_i32 s64, s61, %d" % (54 * 1280))
        A("s_mov_b32 s65, s64")
        for i in range(11):
            A(f"s_mov_b32 m0, {L_WD + 960*i}")
            if i == 9:
                A("s_mov_b32 s65, s64")
            else:
                A("s_nop 0")
            A("buffer_load_dwordx4 v6, s[44:47], s65 offen nt lds")
            A("s_add_u32 s65, s65, 7680")
        A("s_mul_i32 s65, s61, %d" % (128 * 1280))
        for i in range(22):
            A(f"s_mov_b32 m0, {L_WO + 960*i}")
            A("s_nop 0")
            A("buffer_load_dwordx4 v6, s[40:43], s65 offen nt lds")
            A("s_add_u32 s65, s65, 7680")
        A("v_lshrrev_b32 v7, 2, v3")
        A("v_lshl_add_u32 v7, v2, 3, v7")
        A("v_mul_u32_u24 v7, 160, v7")
        A("v_and_b32 v8, 3, v3")
        A("v_lshl_add_u32 v7, v8, 3, v7")
        A("s_waitcnt vmcnt(0)")
        WOR = 128
        WDR = 208
        for t in range(5):
            for s in range(2):
                for u in range(2):
                    rg = WDR + (t * 2 + s) * 4 + 2 * u
                    A(f"ds_read_b64_tr_b16 v[{rg}:{rg+1}], v7 offset:{L_WD + (32*s+4*u)*160 + 32*t}")
            A("s_waitcnt lgkmcnt(0)")
        for t in range(5):
            for s in range(4):
                for u in range(2):
                    rg = WOR + (t * 4 + s) * 4 + 2 * u
                    A(f"ds_read_b64_tr_b16 v[{rg}:{rg+1}], v7 offset:{L_WO + (32*s+4*u)*160 + 32*t}")
            A("s_waitcnt lgkmcnt(0)")
        self.stamp(3)
        A("L_pollA:")
        A("buffer_load_dword v6, off, s[52:55], 0 sc1")
        A("s_waitcnt vmcnt(0)")
        A("v_readfirstlane_b32 s64, v6")
        A("s_cmp_ge_u32 s64, 256")
        A("s_cbranch_scc1 L_gotA")
        A("s_sleep 4")
        A("s_sub_u32 s98, s98, 1")
        A("s_cbranch_scc0 L_pollA")
        A("L_gotA:")
        self.stamp(4)
        A("v_min_u32 v6, 53, v0")
        A("s_mul_i32 s64, s61, 54")
        A("v_add_u32 v6, s64, v6")
        A("v_lshlrev_b32 v6, 2, v6")
        A(f"s_mov_b32 s64, {WS_PA}")
        for i in range(32):
            A(f"buffer_load_dword v{12+i}, v6, s[56:59], s64 offen sc1")
            A("s_add_u32 s64, s64, 6912")
        A("v_and_b32 v9, 1, v0")
        A("v_lshlrev_b32 v9, 8, v9")
        A("v_lshl_add_u32 v9, v2, 4, v9")
        A("v_lshlrev_b32 v8, 1, v0")
        A("v_cmp_gt_u32 vcc, 54, v0")
        A("s_waitcnt vmcnt(0)")
        for q in range(4):
            for rg in range(1, 8):
                A(f"v_add_f32 v{12+q}, v{12+q}, v{12+4*rg+q}")
        for q in range(4):
            self.bf16r(12 + q, 12 + q)
        A("v_mul_f32 v12, v12, v13")
        A("v_mul_f32 v14, v14, v15")
        A("v_cvt_pk_bf16_f32 v12, v12, v12")
        A("v_cvt_pk_bf16_f32 v14, v14, v14")
        A("v_cndmask_b32 v12, 0, v12, vcc")
        A("v_cndmask_b32 v14, 0, v14, vcc")
        A(f"ds_write_b16 v8, v12 offset:{L_HB}")
        A(f"ds_write_b16 v8, v14 offset:{L_HB+256}")
        A("s_waitcnt lgkmcnt(0)")
        A(f"ds_read_b128 v[12:15], v9 offset:{L_HB}")
        A(f"ds_read_b128 v[16:19], v9 offset:{L_HB+64}")
        A("s_waitcnt lgkmcnt(0)")
        for s in range(2):
            for t in range(5):
                d = 20 + 4 * t
                w = WDR + (t * 2 + s) * 4
                c = "0" if s == 0 else f"v[{d}:{d+3}]"
                A(f"v_mfma_f32_16x16x32_bf16 v[{d}:{d+3}], v[{w}:{w+3}], v[{12+4*s}:{15+4*s}], {c}")
        self.nop(8)
        for i in range(20):
            A(f"v_min_u32 v{20+i}, -2, v{20+i}")
        A("s_mov_b64 exec, s[66:67]")
        for t in range(5):
            A(f"buffer_store_dwordx4 v[{20+4*t}:{23+4*t}], v5, s[56:59], s68 offen offset:{64*t} sc1")
        A("s_mov_b64 exec, -1")
        self.stamp(5)
        A("s_lshr_b32 s64, s61, 2")
        A("s_and_b32 s65, s61, 1")
        A("s_sub_u32 s64, s64, s62")
        A("s_or_b32 s64, s64, s65")
        A("s_cmp_eq_u32 s64, 0")
        A("s_cselect_b32 s63, 1, 0")
        A("v_lshrrev_b32 v10, 5, v0")
        A("v_and_b32 v11, 31, v0")
        A("s_bfe_u32 s64, s61, 0x10001")
        A("s_lshl_b32 s65, s62, 1")
        A("s_add_u32 s65, s65, s64")
        A("s_mul_i32 s65, s65, 12288")
        A("v_min_u32 v40, 19, v11")
        A("v_mul_u32_u24 v41, 384, v10")
        A("v_lshl_add_u32 v41, v40, 4, v41")
        A("v_add_u32 v41, s65, v41")
        A("s_mul_i32 s64, s64, 1280")
        A("s_mul_i32 s65, s62, 160")
        A("s_add_u32 s64, s64, s65")
        A("v_lshlrev_b32 v42, 3, v40")
        A("v_add_u32 v42, s64, v42")

        def poll32(label, base):
            A(f"s_mov_b32 s64, {base}")
            A(f"s_mov_b32 s65, {base+4608}")
            A(f"s_mov_b32 s70, {base+9216}")
            A(f"{label}:")
            for kk in range(16):
                so = ("s64", "s65", "s70")[kk // 6]
                A(f"buffer_load_dwordx4 v[{48+4*kk}:{51+4*kk}], v41, s[56:59], {so} offen offset:{768*(kk%6)} sc1")
            A("s_waitcnt vmcnt(0)")
            A("v_max3_u32 v43, v48, v49, v50")
            for i in range(51, 111, 2):
                A(f"v_max3_u32 v43, v43, v{i}, v{i+1}")
            A("v_max_u32 v43, v43, v111")
            A("v_cmp_eq_u32 vcc, -1, v43")
            A(f"s_cbranch_vccz {label}_ok")
            A("s_sub_u32 s98, s98, 1")
            A(f"s_cbranch_scc0 {label}")
            A(f"{label}_ok:")
            for lvl in (32, 16, 8, 4):
                for i in range(lvl):
                    A(f"v_add_f32 v{48+i}, v{48+i}, v{48+lvl+i}")
            for k in range(4):
                A(f"v_mov_b32 v{44+k}, v{48+k}")
            self.nop(1)
            for k in range(4):
                A(f"v_permlane32_swap_b32 v{44+k}, v{48+k}")
            self.nop(1)
            for k in range(4):
                A(f"v_add_f32 v{44+k}, v{44+k}, v{48+k}")

        A("s_cmp_eq_u32 s63, 0")
        A("s_cbranch_scc1 L_noG")
        A("buffer_load_dwordx2 v[112:113], v42, s[28:31], 0 offen")
        poll32("L_pollG", WS_G)
        for k in range(4):
            self.bf16r(44 + k, 44 + k)
        for k in range(4):
            A(f"v_mul_f32 v{48+k}, {0xBFB8AA3B:#x}, v{44+k}")
        for k in range(4):
            A(f"v_exp_f32 v{48+k}, v{48+k}")
        for k in range(4):
            A(f"v_add_f32 v{48+k}, 1.0, v{48+k}")
        for k in range(4):
            A(f"v_rcp_f32 v{48+k}, v{48+k}")
        for k in range(4):
            A(f"v_mul_f32 v{116+k}, v{44+k}, v{48+k}")
        for k in range(4):
            self.bf16r(116 + k, 116 + k)
        A("v_lshlrev_b32 v120, 16, v112")
        A("v_and_b32 v121, 0xffff0000, v112")
        A("v_lshlrev_b32 v122, 16, v113")
        A("v_and_b32 v123, 0xffff0000, v113")
        A("L_noG:")
        self.stamp(6)
        A("s_mul_i32 s64, s61, 5120")
        A(f"s_add_u32 s64, s64, {WS_OP:#x}")
        A("v_mul_u32_u24 v6, 640, v10")
        A("v_lshl_add_u32 v6, v11, 4, v6")
        A("v_add_u32 v6, s64, v6")
        A("v_and_b32 v7, 7, v0")
        A("v_xor_b32 v7, v7, v10")
        A("v_mul_u32_u24 v7, 640, v7")
        A("v_add_u32 v7, s64, v7")
        A("v_lshlrev_b32 v8, 4, v11")
        A("v_lshlrev_b32 v40, 3, v11")
        A("v_lshl_add_u32 v40, v10, 8, v40")
        A(f"s_mov_b32 s71, {LOG2E:#x}")
        A("s_mov_b32 s64, 0")
        A("s_mov_b32 s65, 1")
        A("v_mov_b32 v1, 0")
        A("s_setprio 0")
        A("L_waitS:")
        A(f"ds_read_b32 v12, v1 offset:{L_CNT}")
        A("s_waitcnt lgkmcnt(0)")
        A("v_readfirstlane_b32 s70, v12")
        A("s_cmp_ge_u32 s70, 4")
        A("s_cbranch_scc1 L_gotS")
        A("s_sleep 1")
        A("s_sub_u32 s99, s99, 1")
        A("s_cbranch_scc0 L_waitS")
        A("L_gotS:")
        A("s_setprio 3")
        self.stamp(7)
        A(f"ds_read_b128 v[12:15], v1 offset:{L_ML}")
        A(f"ds_read_b128 v[16:19], v1 offset:{L_ML+16}")
        for w in range(4):
            A(f"ds_read_b128 v[{20+4*w}:{23+4*w}], v8 offset:{L_OP+512*w}")
        A("s_waitcnt lgkmcnt(4)")
        A("v_max3_f32 v36, v12, v14, v16")
        A("v_max_f32 v36, v36, v18")
        for w in range(4):
            A(f"v_sub_f32 v{12+2*w}, v{12+2*w}, v36")
        for w in range(4):
            A(f"v_mul_f32 v{12+2*w}, s71, v{12+2*w}")
        for w in range(4):
            A(f"v_exp_f32 v{12+2*w}, v{12+2*w}")
        self.nop(1)
        A("v_mul_f32 v37, v12, v13")
        for w in range(1, 4):
            A(f"v_fmac_f32 v37, v{12+2*w}, v{13+2*w}")
        A("s_waitcnt lgkmcnt(0)")
        for k in range(4):
            A(f"v_mul_f32 v{20+k}, v12, v{20+k}")
        for w in range(1, 4):
            for k in range(4):
                A(f"v_fmac_f32 v{20+k}, v{12+2*w}, v{20+4*w+k}")
        A("v_cndmask_b32 v20, v20, v36, s[64:65]")
        A("v_cndmask_b32 v21, v21, v37, s[64:65]")
        for k in range(4):
            A(f"v_min_u32 v{20+k}, -2, v{20+k}")
        self.setexec(0xffffffff, 1)
        A("buffer_store_dwordx4 v[20:23], v4, s[56:59], 0 offen sc1")
        A("s_mov_b64 exec, -1")
        self.stamp(8)
        A("L_pollO:")
        A("buffer_load_dwordx2 v[28:29], v7, s[56:59], 0 offen offset:512 sc1")
        for kk in range(4):
            A(f"buffer_load_dwordx4 v[{48+4*kk}:{51+4*kk}], v6, s[56:59], 0 offen offset:{1280*kk} sc1")
        A("s_waitcnt vmcnt(0)")
        A("v_max3_u32 v43, v28, v29, v48")
        for i in range(49, 63, 2):
            A(f"v_max3_u32 v43, v43, v{i}, v{i+1}")
        A("v_max_u32 v43, v43, v63")
        A("v_cmp_eq_u32 vcc, -1, v43")
        A("s_cbranch_vccz L_pollO_ok")
        A("s_sub_u32 s98, s98, 1")
        A("s_cbranch_scc0 L_pollO")
        A("L_pollO_ok:")
        self.stamp(9)
        A("v_max_f32_dpp v30, v28, v28 quad_perm:[1,0,3,2] row_mask:0xf bank_mask:0xf")
        self.nop(2)
        A("v_max_f32_dpp v30, v30, v30 quad_perm:[2,3,0,1] row_mask:0xf bank_mask:0xf")
        A("v_sub_f32 v30, v28, v30")
        A("v_mul_f32 v30, s71, v30")
        A("v_exp_f32 v30, v30")
        self.nop(1)
        A("v_mul_f32 v31, v30, v29")
        self.nop(2)
        A("v_add_f32_dpp v31, v31, v31 quad_perm:[1,0,3,2] row_mask:0xf bank_mask:0xf")
        self.nop(2)
        A("v_add_f32_dpp v31, v31, v31 quad_perm:[2,3,0,1] row_mask:0xf bank_mask:0xf")
        A("v_rcp_f32 v31, v31")
        self.nop(1)
        A("v_mul_f32 v30, v30, v31")
        self.nop(2)
        for b in range(2):
            for k in range(4):
                A(f"v_mul_f32_dpp v{12+4*b+k}, v30, v{48+8*b+k} row_newbcast:{4*b} row_mask:0xf bank_mask:0xf")
            for k in range(4):
                A(f"v_fmac_f32_dpp v{12+4*b+k}, v30, v{52+8*b+k} row_newbcast:{4*b+2} row_mask:0xf bank_mask:0xf")
        self.nop(1)
        for k in range(4):
            A(f"v_permlane32_swap_b32 v{12+k}, v{16+k}")
        self.nop(1)
        for k in range(4):
            A(f"v_add_f32 v{12+k}, v{12+k}, v{16+k}")
        A("v_cvt_pk_bf16_f32 v12, v12, v13")
        A("v_cvt_pk_bf16_f32 v13, v14, v15")
        A(f"ds_write_b64 v40, v[12:13] offset:{L_HB}")
        A("s_waitcnt lgkmcnt(0)")
        for s in range(4):
            A(f"ds_read_b128 v[{12+4*s}:{15+4*s}], v9 offset:{L_HB+64*s}")
        for s in range(4):
            A(f"s_waitcnt lgkmcnt({3-s})")
            for t in range(5):
                d = 48 + 4 * t
                w = WOR + (t * 4 + s) * 4
                c = "0" if s == 0 else f"v[{d}:{d+3}]"
                A(f"v_mfma_f32_16x16x32_bf16 v[{d}:{d+3}], v[{w}:{w+3}], v[{12+4*s}:{15+4*s}], {c}")
        self.nop(4)
        A("s_mov_b64 exec, s[66:67]")
        for t in range(5):
            for k in range(4):
                A(f"v_min_u32 v{48+4*t+k}, -2, v{48+4*t+k}")
            A(f"buffer_store_dwordx4 v[{48+4*t}:{51+4*t}], v5, s[56:59], s69 offen offset:{64*t} sc1")
        A("s_mov_b64 exec, -1")
        self.stamp(10)
        A("s_cmp_eq_u32 s63, 0")
        A("s_cbranch_scc1 L_auxdone")
        poll32("L_pollY", WS_Y)
        self.stamp(11)
        for k in range(4):
            self.bf16r(44 + k, 44 + k)
        for k in range(4):
            A(f"v_mul_f32 v{44+k}, v{44+k}, v{116+k}")
        for k in range(4):
            self.bf16r(44 + k, 44 + k)
        for k in range(4):
            A(f"v_add_f32 v{44+k}, v{44+k}, v{120+k}")
        A("v_cvt_pk_bf16_f32 v44, v44, v45")
        A("v_cvt_pk_bf16_f32 v45, v46, v47")
        self.setexec(0xfffff, 0)
        A("buffer_store_dwordx2 v[44:45], v42, s[48:51], 0 offen")
        A("L_auxdone:")
        if self.stamps:
            A("s_waitcnt vmcnt(0)")
        self.stamp(12)
        self.dump_stamps(13)

    def text(self):
        self.build()
        out = [HEADER.rstrip("\n")]
        out.append(f"; @launch grid=(256,1,1) block=(320,1,1) lds={L_END}")
        out.append('.amdgcn_target "amdgcn-amd-amdhsa--gfx950"')
        out += [".text", f".globl {KNAME}", ".p2align 8", f".type {KNAME},@function", f"{KNAME}:"]
        out += self.L
        out += ['.section .rodata,"a"', ".p2align 6", f".amdhsa_kernel {KNAME}",
                "  .amdhsa_next_free_vgpr 256", "  .amdhsa_next_free_sgpr 102", "  .amdhsa_accum_offset 256",
                "  .amdhsa_group_segment_fixed_size 0", "  .amdhsa_kernarg_size 96", "  .amdhsa_user_sgpr_count 2",
                "  .amdhsa_user_sgpr_kernarg_segment_ptr 1", "  .amdhsa_system_sgpr_workgroup_id_x 1",
                "  .amdhsa_float_denorm_mode_32 3",
                ".end_amdhsa_kernel"]
        return "\n".join(out) + "\n"


if __name__ == "__main__":
    import argparse, ast
    ap = argparse.ArgumentParser()
    ap.add_argument("out")
    ap.add_argument("opts", nargs="*")
    a = ap.parse_args()
    kw = {}
    for o in a.opts:
        k, v = o.split("=", 1)
        try:
            v = ast.literal_eval(v)
        except Exception:
            pass
        kw[k] = v
    t = Gen(**kw).text()
    open(a.out, "w").write(t)
    sys.path.insert(0, "gen")
    import lint
    r = lint.lint(t)
    print("\n".join(r) if r else "lint clean")
```

```python
import sys
KNAME = "recurrent_scan__mha_block_cached__glu_gated_bilinear__decode_kernel"
HEADER = open("recurrent_scan__mha_block_cached__glu_gated_bilinear__decode.s.ref").read().split("; Override launch")[0]

WS_PA = 0x00000
WS_OP = 0x40000
WS_G = 0x70000
WS_Y = 0xA0000
WS_ST = 0x100000
WS_SIZE = 0x200000
L_QP = 0x0000
L_OP = 0x0800
L_ML = 0x1000
L_CNT = 0x1040
L_HB = 0x1100
L_SC = 0x1400
L_WO = 0x5400
L_WD = L_WO + 21504
L_END = L_WD + 11264
LOG2E = 0x3FB8AA3B
SCALE = 0x3DB504F3
INV640 = 0x3ACCCCCD
EPS = 0x3727C5AC


class Gen:
    def __init__(self, stamps=False, pattern="g4b4", wq_flags="", aux_early=False, kvflags="nt", vflags=None, mix=(5, 2)):
        self.L = []
        self.stamps = stamps
        self.pattern = pattern
        self.wq_flags = wq_flags
        self.aux_early = aux_early
        self.kvflags = kvflags
        self.vflags = kvflags if vflags is None else vflags
        self.mix = mix
        self.nst = 0

    def A(self, s):
        self.L.append("    " + s if not s.endswith(":") else s)

    def nop(self, n):
        while n > 0:
            k = min(n, 16)
            self.A(f"s_nop {k-1}")
            n -= k

    def stamp(self, idx):
        if self.stamps:
            self.A(f"s_memrealtime s[{72+2*idx}:{73+2*idx}]")

    def setexec(self, lo, hi):
        self.A(f"s_mov_b32 exec_lo, {lo:#x}")
        self.A(f"s_mov_b32 exec_hi, {hi:#x}")

    def srd(self, d, p, size):
        self.A(f"s_mov_b32 s{d}, s{p}")
        self.A(f"s_and_b32 s{d+1}, s{p+1}, 0xffff")
        self.A(f"s_mov_b32 s{d+2}, {size:#x}")
        self.A(f"s_mov_b32 s{d+3}, 0x20000")

    def wave_reduce(self, op, r, t):
        A = self.A
        for sh in (8, 4, 2, 1):
            self.nop(2)
            A(f"{op}_dpp v{r}, v{r}, v{r} row_ror:{sh} row_mask:0xf bank_mask:0xf")
        for sw in ("v_permlane16_swap_b32", "v_permlane32_swap_b32"):
            A(f"v_mov_b32 v{t}, v{r}")
            self.nop(2)
            A(f"{sw} v{r}, v{t}")
            self.nop(1)
            A(f"{op} v{r}, v{r}, v{t}")

    def bf16r(self, d, s):
        self.A(f"v_cvt_pk_bf16_f32 v{d}, v{s}, v{s}")
        self.A(f"v_and_b32 v{d}, 0xffff0000, v{d}")

    def unpack10(self, raw, out):
        for e in range(10):
            if e % 2 == 0:
                self.A(f"v_lshlrev_b32 v{out+e}, 16, v{raw+e//2}")
            else:
                self.A(f"v_and_b32 v{out+e}, 0xffff0000, v{raw+e//2}")

    def ln_stats(self, x, mb, rs, t0, t1):
        A = self.A
        A(f"v_add_f32 v{mb}, v{x}, v{x+1}")
        for e in range(2, 10):
            A(f"v_add_f32 v{mb}, v{mb}, v{x+e}")
        self.wave_reduce("v_add_f32", mb, t0)
        A(f"v_mul_f32 v{mb}, {INV640:#x}, v{mb}")
        A(f"v_sub_f32 v{t0}, v{x}, v{mb}")
        A(f"v_mul_f32 v{rs}, v{t0}, v{t0}")
        for e in range(1, 10):
            A(f"v_sub_f32 v{t0}, v{x+e}, v{mb}")
            A(f"v_fmac_f32 v{rs}, v{t0}, v{t0}")
        self.wave_reduce("v_add_f32", rs, t0)
        A(f"v_mul_f32 v{rs}, {INV640:#x}, v{rs}")
        self.bf16r(mb, mb)
        self.bf16r(rs, rs)
        A(f"v_add_f32 v{rs}, {EPS:#x}, v{rs}")
        self.bf16r(rs, rs)
        A(f"v_sqrt_f32 v{rs}, v{rs}")
        self.nop(1)
        self.bf16r(rs, rs)
        A(f"v_rcp_f32 v{rs}, v{rs}")
        self.nop(1)

    def ln_apply(self, x, mb, rs):
        A = self.A
        for e in range(10):
            A(f"v_sub_f32 v{x+e}, v{x+e}, v{mb}")
        for e in range(10):
            self.bf16r(x + e, x + e)
        for e in range(10):
            A(f"v_mul_f32 v{x+e}, v{x+e}, v{rs}")
        for e in range(10):
            A(f"v_cvt_pk_bf16_f32 v{x+e}, v{x+e}, v{x+e}")

    def dump_stamps(self, nst):
        if not self.stamps:
            return
        A = self.A
        A("s_waitcnt lgkmcnt(0)")
        self.srd(56, 26, WS_SIZE)
        A("s_mul_i32 s64, s2, 5")
        A("s_add_u32 s64, s64, s60")
        A("s_lshl_b32 s64, s64, 6")
        A(f"s_add_u32 s64, s64, {WS_ST:#x}")
        A("s_mov_b64 exec, 1")
        A("v_mov_b32 v1, s64")
        for i in range(nst):
            A(f"v_mov_b32 v{4+i}, s{72+2*i}")
        for i in range(nst, 15):
            A(f"v_mov_b32 v{4+i}, 0")
        A("s_getreg_b32 s65, hwreg(HW_REG_XCC_ID)")
        A("v_mov_b32 v19, s65")
        for q in range(4):
            A(f"buffer_store_dwordx4 v[{4+4*q}:{7+4*q}], v1, s[56:59], 0 offen offset:{16*q}")

    def build(self):
        A = self.A
        NB = 8
        A(f"s_cmp_ge_u32 s2, 256")
        A("s_cbranch_scc1 L_end")
        self.stamp(0)
        A("s_load_dwordx16 s[4:19], s[0:1], 0")
        A("s_load_dwordx8 s[20:27], s[0:1], 64")
        A("v_lshrrev_b32 v1, 6, v0")
        A("v_and_b32 v0, 63, v0")
        A("v_readfirstlane_b32 s60, v1")
        A("s_and_b32 s61, s2, 7")
        A("s_lshl_b32 s61, s61, 2")
        A("s_bfe_u32 s64, s2, 0x20003")
        A("s_add_u32 s61, s61, s64")
        A("s_lshr_b32 s62, s2, 5")
        A("s_lshr_b32 s63, s2, 7")
        A("s_cmp_eq_u32 s60, 0")
        A("s_cbranch_scc1 L_aux")
        self.stream(NB)
        A("L_aux:")
        self.aux()
        A("L_end:")
        A("s_endpgm")

    def stream(self, NB):
        A = self.A
        SA, SB = 128, 192
        XD = 20
        A("s_sub_u32 s64, s60, 1")
        A("v_lshrrev_b32 v30, 4, v0")
        A("v_and_b32 v31, 15, v0")
        A("s_lshl_b32 s65, s64, 2")
        A("v_add_u32 v3, s65, v31")
        A("v_and_b32 v3, 15, v3")
        A("v_mul_u32_u24 v3, 20, v3")
        A("v_mul_u32_u24 v2, 320, v30")
        A("s_mul_i32 s66, s63, 1280")
        A("v_add3_u32 v3, v3, v2, s66")
        A("s_mul_i32 s65, s64, %d" % (40 * 8192))
        A("s_lshl_b32 s66, s61, 8")
        A("s_add_u32 s65, s65, s66")
        A("s_mov_b32 s66, %d" % (160 * 8192))
        A("v_mul_lo_u32 v2, v30, s66")
        A("v_lshl_add_u32 v2, v31, 4, v2")
        A("v_add_u32 v2, s65, v2")
        A("s_lshl_b32 s65, s63, 5")
        A("s_add_u32 s65, s65, s61")
        A("s_lshl_b32 s65, s65, 21")
        A("s_and_b32 s66, s62, 3")
        A("s_lshl_b32 s66, s66, 2")
        A("s_add_u32 s66, s66, s64")
        if self.pattern == "g4b4":
            A("s_lshl_b32 s66, s66, 12")
            SUBSTEP = 65536
        elif self.pattern == "contig":
            A("s_lshl_b32 s66, s66, 17")
            SUBSTEP = 4096
        else:
            raise ValueError
        A("s_add_u32 s65, s65, s66")
        A("v_lshlrev_b32 v1, 4, v0")
        A("v_add_u32 v1, s65, v1")
        A("s_waitcnt lgkmcnt(0)")
        self.srd(28, 4, 2560)
        A("buffer_load_dwordx4 v[8:11], v3, s[28:31], 0 offen")
        A("buffer_load_dword v12, v3, s[28:31], 0 offen offset:16")
        self.srd(36, 10, 640 * 4096 * 2)
        self.srd(32, 6, 0x8000000)
        A("s_mov_b32 s67, 0")
        A("s_mov_b32 s68, 0")

        def wqreg(n):
            return 32 + 4 * n if n < 24 else SB + 4 * (n - 24)

        issued = ["x0", "x1"]

        def kload(slot, r, fl=None):
            reg = slot + 4 * r
            fl = self.kvflags if fl is None else fl
            A(f"buffer_load_dwordx4 v[{reg}:{reg+3}], v1, s[32:35], s68 offen offset:{(r&3)*1024} {fl}")
            if r & 3 == 3:
                A(f"s_add_u32 s68, s68, {SUBSTEP}")

        a, b_ = self.mix
        n = 0
        r = 0
        while n < 40 or r < 16:
            for _ in range(a):
                if n < 40:
                    reg = wqreg(n)
                    A(f"buffer_load_dwordx4 v[{reg}:{reg+3}], v2, s[36:39], s67 offen {self.wq_flags}")
                    A("s_add_u32 s67, s67, 8192")
                    issued.append(f"w{n}")
                    n += 1
            for _ in range(b_):
                if r < 16:
                    kload(SA, r)
                    issued.append(f"a{r}")
                    r += 1
        self.stamp(1)
        A("v_and_b32 v16, 1, v31")
        A("v_lshlrev_b32 v16, 4, v16")
        A("v_mov_b32 v17, 0xffff")
        A("v_lshlrev_b32 v16, v16, v17")
        A("v_lshrrev_b32 v17, 1, v31")
        for k in range(4):
            A(f"v_cmp_eq_u32 vcc, {k}, v17")
            self.nop(2)
            A(f"v_cndmask_b32 v{4+k}, 0, v16, vcc")
        A("s_mov_b32 s40, 0xcccccccc")
        A("s_mov_b32 s41, 0xcccccccc")
        A("s_mov_b32 s42, 0xaaaaaaaa")
        A("s_mov_b32 s43, 0xaaaaaaaa")

        def wait_for(tag):
            A(f"s_waitcnt vmcnt({len(issued)-1-issued.index(tag)})")

        wait_for("x1")
        self.stamp(2)
        self.unpack10(8, XD)
        self.ln_stats(XD, 13, 14, 15, 16)
        self.ln_apply(XD, 13, 14)
        self.nop(2)

        def mkA(aset, src, lane):
            for k in range(4):
                A(f"v_and_b32_dpp v{aset+k}, v{src}, v{4+k} row_newbcast:{lane} row_mask:0xf bank_mask:0xf")

        mkA(8, XD + 0, 0)
        for n in range(40):
            cur = 8 + 4 * (n & 1)
            if n + 1 < 40:
                mkA(8 + 4 * ((n + 1) & 1), XD + (n + 1) % 10, (n + 1) // 10)
            else:
                self.nop(2)
            wait_for(f"w{n}")
            reg = wqreg(n)
            c = "0" if n == 0 else "v[16:19]"
            A(f"v_mfma_f32_16x16x32_bf16 v[16:19], v[{cur}:{cur+3}], v[{reg}:{reg+3}], {c}")
            if n >= 24:
                kload(SB, n - 24)
                issued.append(f"b{n-24}")
        self.stamp(3)
        A("v_lshlrev_b32 v3, 5, v31")
        A("v_lshl_add_u32 v3, v30, 4, v3")
        A("s_lshl_b32 s65, s64, 9")
        A("v_add_u32 v3, s65, v3")
        self.nop(5)
        self.setexec(0xffffffff, 0)
        A(f"ds_write_b128 v3, v[16:19] offset:{L_QP}")
        A("s_mov_b64 exec, -1")
        A("s_waitcnt lgkmcnt(0)")
        A("s_barrier")
        A("v_lshlrev_b32 v2, 5, v31")
        for w in range(4):
            A(f"ds_read_b128 v[{32+8*w}:{35+8*w}], v2 offset:{L_QP+512*w}")
            A(f"ds_read_b128 v[{36+8*w}:{39+8*w}], v2 offset:{L_QP+512*w+16}")
        A("s_lshl_b32 s65, s64, 12")
        A("v_lshlrev_b32 v29, 2, v0")
        A("v_add_u32 v29, s65, v29")
        A("v_mov_b32 v24, 0xff800000")
        A("v_mov_b32 v25, 0")
        A("s_waitcnt lgkmcnt(0)")
        for e in range(8):
            A(f"v_add_f32 v{32+e}, v{32+e}, v{40+e}")
            A(f"v_add_f32 v{48+e}, v{48+e}, v{56+e}")
        for e in range(8):
            A(f"v_add_f32 v{32+e}, v{32+e}, v{48+e}")
        for k in range(4):
            A(f"v_cvt_pk_bf16_f32 v{20+k}, v{32+2*k}, v{33+2*k}")
        self.stamp(4)
        A("s_mov_b32 s69, 2")
        A("v_mov_b32 v28, v29")
        P = 32

        def switch_stream():
            lab = f"L_sw{self.nst}"
            self.nst += 1
            A(f"s_cmp_lg_u32 s69, {NB}")
            A(f"s_cbranch_scc1 {lab}")
            A("s_mov_b32 s32, s8")
            A("s_and_b32 s33, s9, 0xffff")
            A("s_mov_b32 s68, 0")
            A(f"{lab}:")
            A("s_add_u32 s69, s69, 1")

        def kblock(slot):
            switch_stream()
            for r in range(16):
                reg = slot + 4 * r
                A("s_waitcnt vmcnt(31)")
                A(f"v_dot2_f32_bf16 v{P+r}, v{reg}, v20, 0")
                for k in range(1, 4):
                    A(f"v_dot2_f32_bf16 v{P+r}, v{reg+k}, v{20+k}, v{P+r}")
                kload(slot, r)
            for r in range(8):
                A(f"v_add_f32_dpp v{P+r}, v{P+r}, v{P+r} row_ror:8 row_mask:0xf bank_mask:0x3")
                A(f"v_add_f32_dpp v{P+r}, v{P+r+8}, v{P+r+8} row_ror:8 row_mask:0xf bank_mask:0xc")
            for r in range(4):
                A(f"v_add_f32_dpp v{P+r}, v{P+r}, v{P+r} row_shl:4 row_mask:0xf bank_mask:0x5")
                A(f"v_add_f32_dpp v{P+r}, v{P+r+4}, v{P+r+4} row_shr:4 row_mask:0xf bank_mask:0xa")
            self.nop(1)
            for r in range(4):
                A(f"v_add_f32_dpp v{P+r}, v{P+r}, v{P+r} quad_perm:[2,3,0,1] row_mask:0xf bank_mask:0xf")
            A(f"v_cndmask_b32 v{P}, v{P}, v{P+2}, s[40:41]")
            A(f"v_cndmask_b32 v{P+1}, v{P+1}, v{P+3}, s[40:41]")
            self.nop(1)
            A(f"v_add_f32_dpp v{P}, v{P}, v{P} quad_perm:[1,0,3,2] row_mask:0xf bank_mask:0xf")
            A(f"v_add_f32_dpp v{P+1}, v{P+1}, v{P+1} quad_perm:[1,0,3,2] row_mask:0xf bank_mask:0xf")
            A(f"v_cndmask_b32 v{P}, v{P}, v{P+1}, s[42:43]")
            self.bf16r(P, P)
            A(f"v_mul_f32 v{P}, {SCALE:#x}, v{P}")
            self.bf16r(P, P)
            A(f"v_max_f32 v24, v24, v{P}")
            A(f"ds_write_b32 v28, v{P} offset:{L_SC}")
            A("v_add_u32 v28, 256, v28")

        A(f"s_mov_b32 s70, {NB//2}")
        A("L_kloop:")
        kblock(SA)
        kblock(SB)
        A("s_sub_u32 s70, s70, 1")
        A("s_cmp_lg_u32 s70, 0")
        A("s_cbranch_scc1 L_kloop")
        self.stamp(5)
        A("s_waitcnt lgkmcnt(0)")
        A(f"ds_read_b32 v27, v29 offset:{L_SC}")
        self.wave_reduce("v_max_f32", 24, 30)
        A(f"v_mul_f32 v28, {LOG2E:#x}, v24")
        A("v_sub_f32 v28, 0, v28")
        A(f"s_mov_b32 s71, {LOG2E:#x}")
        for k in range(4):
            A(f"v_mov_b32 v{16+k}, 0")

        def mkP():
            A("s_waitcnt lgkmcnt(0)")
            A("v_fma_f32 v30, v27, s71, v28")
            A("v_add_u32 v29, 256, v29")
            A("v_exp_f32 v30, v30")
            A(f"ds_read_b32 v27, v29 offset:{L_SC}")
            A("v_add_f32 v25, v25, v30")
            A("v_cvt_pk_bf16_f32 v26, v30, v30")

        def vblock(slot):
            lab = f"L_sw{self.nst}"
            self.nst += 1
            A(f"s_cmp_lg_u32 s69, {2*NB}")
            A(f"s_cbranch_scc1 {lab}")
            A("s_mov_b32 s34, 0")
            A(f"{lab}:")
            A("s_add_u32 s69, s69, 1")
            mkP()
            self.nop(2)
            mkA(8, 26, 0)
            for r in range(16):
                cur = 8 + 4 * (r & 1)
                if r + 1 < 16:
                    mkA(8 + 4 * ((r + 1) & 1), 26, r + 1)
                else:
                    self.nop(1)
                reg = slot + 4 * r
                A("s_waitcnt vmcnt(31)")
                A(f"v_mfma_f32_16x16x32_bf16 v[16:19], v[{cur}:{cur+3}], v[{reg}:{reg+3}], v[16:19]")
                kload(slot, r, self.vflags)

        A(f"s_mov_b32 s70, {NB//2}")
        A("L_vloop:")
        vblock(SA)
        vblock(SB)
        A("s_sub_u32 s70, s70, 1")
        A("s_cmp_lg_u32 s70, 0")
        A("s_cbranch_scc1 L_vloop")
        self.stamp(6)
        self.wave_reduce("v_add_f32", 25, 30)
        self.setexec(0xffffffff, 0)
        A(f"ds_write_b128 v3, v[16:19] offset:{L_OP}")
        A("s_mov_b64 exec, 1")
        A("s_lshl_b32 s65, s64, 3")
        A("v_mov_b32 v2, s65")
        A(f"ds_write_b64 v2, v[24:25] offset:{L_ML}")
        A("v_mov_b32 v2, 0")
        A("v_mov_b32 v30, 1")
        A("s_waitcnt lgkmcnt(0)")
        A(f"ds_add_u32 v2, v30 offset:{L_CNT}")
        self.stamp(7)
        self.dump_stamps(8)
        A("s_endpgm")

    def aux(self):
        A = self.A
        A("s_setprio 3")
        A("s_mov_b32 s98, 0x40000")
        A("s_mov_b32 s99, 0x400000")
        A("v_mov_b32 v1, 0")
        A(f"ds_write_b32 v1, v1 offset:{L_CNT}")
        A("v_lshrrev_b32 v2, 4, v0")
        A("v_and_b32 v3, 15, v0")
        A("s_waitcnt lgkmcnt(0)")
        if not self.aux_early:
            A("s_barrier")
        self.srd(28, 4, 2560)
        self.srd(32, 16, 640 * 1728 * 2)
        self.srd(36, 18, 640 * 1728 * 2)
        self.srd(40, 12, 4096 * 640 * 2)
        self.srd(44, 20, 1728 * 640 * 2)
        self.srd(48, 22, 2560)
        self.srd(52, 24, 256)
        self.srd(56, 26, WS_SIZE)
        self.stamp(1)
        for k in range(4):
            A(f"v_mov_b32 v{8+k}, -1")
        A("s_lshl_b32 s64, s61, 3")
        A("s_add_u32 s64, s64, s62")
        A("s_mul_i32 s64, s64, 640")
        A(f"s_add_u32 s64, s64, {WS_OP:#x}")
        A("v_lshlrev_b32 v4, 4, v0")
        A("v_add_u32 v4, s64, v4")
        self.setexec(0xffffffff, 1)
        A("buffer_store_dwordx4 v[8:11], v4, s[56:59], 0 offen sc1")
        A("s_mov_b64 exec, -1")
        A("s_lshl_b32 s64, s62, 6")
        A("s_add_u32 s64, s64, s61")
        A("s_mul_i32 s64, s64, 384")
        A("v_and_b32 v5, 1, v0")
        A("v_mul_u32_u24 v5, 12288, v5")
        A("v_lshl_add_u32 v5, v2, 4, v5")
        A("v_add_u32 v5, s64, v5")
        A("s_mov_b32 s66, 0x00030003")
        A("s_mov_b32 s67, 0x00030003")
        A(f"s_mov_b32 s68, {WS_G:#x}")
        A(f"s_mov_b32 s69, {WS_Y:#x}")
        A("s_mov_b64 exec, s[66:67]")
        for t in range(5):
            A(f"buffer_store_dwordx4 v[8:11], v5, s[56:59], s68 offen offset:{64*t} sc1")
            A(f"buffer_store_dwordx4 v[8:11], v5, s[56:59], s69 offen offset:{64*t} sc1")
        A("s_mov_b64 exec, -1")
        A("s_cmp_ge_u32 s2, 216")
        A("s_cbranch_scc1 L_noA")
        A("s_mul_i32 s64, s2, 2428")
        A("s_lshr_b32 s64, s64, 16")
        A("s_mul_i32 s65, s64, 27")
        A("s_sub_u32 s65, s2, s65")
        A("v_mul_u32_u24 v6, 20, v0")
        A("buffer_load_dwordx4 v[12:15], v6, s[28:31], 0 offen")
        A("buffer_load_dword v16, v6, s[28:31], 0 offen offset:16")
        A("buffer_load_dwordx4 v[20:23], v6, s[28:31], 0 offen offset:1280")
        A("buffer_load_dword v24, v6, s[28:31], 0 offen offset:1296")
        A("v_lshrrev_b32 v7, 3, v0")
        A("v_mul_u32_u24 v6, 20, v7")
        A("s_mul_i32 s70, s64, 160")
        A("v_add_u32 v6, s70, v6")
        A("buffer_load_dwordx4 v[28:31], v6, s[28:31], 0 offen")
        A("buffer_load_dword v32, v6, s[28:31], 0 offen offset:16")
        A("buffer_load_dwordx4 v[36:39], v6, s[28:31], 0 offen offset:1280")
        A("buffer_load_dword v40, v6, s[28:31], 0 offen offset:1296")
        A("v_mul_u32_u24 v6, 34560, v7")
        A("v_and_b32 v7, 7, v0")
        A("v_lshl_add_u32 v6, v7, 4, v6")
        A("s_mul_i32 s70, s64, %d" % (80 * 3456))
        A("s_lshl_b32 s71, s65, 7")
        A("s_add_u32 s70, s70, s71")
        A("v_add_u32 v6, s70, v6")
        A("s_mov_b32 s70, 0")
        WG0, WU0 = 128, 168
        for r in range(10):
            A(f"buffer_load_dwordx4 v[{WG0+4*r}:{WG0+4*r+3}], v6, s[32:35], s70 offen nt")
            A(f"buffer_load_dwordx4 v[{WU0+4*r}:{WU0+4*r+3}], v6, s[36:39], s70 offen nt")
            A("s_add_u32 s70, s70, 3456")
        if self.aux_early:
            A("s_barrier")
        A("v_and_b32 v44, 1, v3")
        A("v_lshlrev_b32 v44, 4, v44")
        A("v_mov_b32 v45, 0xffff")
        A("v_lshlrev_b32 v44, v44, v45")
        A("v_bfe_u32 v45, v3, 1, 2")
        for k in range(4):
            A(f"v_cmp_eq_u32 vcc, {k}, v45")
            self.nop(2)
            A(f"v_cndmask_b32 v{48+k}, 0, v44, vcc")
        A("s_waitcnt vmcnt(20)")
        X0, X1 = 60, 70
        for (raw, rawA, X) in ((12, 28, X0), (20, 36, X1)):
            self.unpack10(raw, 80)
            self.ln_stats(80, 52, 53, 54, 55)
            self.unpack10(rawA, X)
            self.ln_apply(X, 52, 53)
        D = {(0, 0): 96, (0, 1): 100, (1, 0): 104, (1, 1): 108}
        for r in range(10):
            for b, X in ((0, X0), (1, X1)):
                for k in range(4):
                    A(f"v_and_b32 v{112+4*b+k}, v{X+r}, v{48+k}")
            A(f"s_waitcnt vmcnt({18-2*r})")
            self.nop(1)
            for b in range(2):
                for mat, W in ((0, WG0), (1, WU0)):
                    d = D[(b, mat)]
                    c = "0" if r == 0 else f"v[{d}:{d+3}]"
                    A(f"v_mfma_f32_16x16x32_bf16 v[{d}:{d+3}], v[{112+4*b}:{115+4*b}], v[{W+4*r}:{W+4*r+3}], {c}")
        A("v_add_u32 v6, 40, v0")
        A("v_and_b32 v6, 63, v6")
        A("v_lshlrev_b32 v6, 2, v6")
        self.nop(8)
        for i in range(16):
            A(f"ds_bpermute_b32 v{112+i}, v6, v{96+i}")
        A("s_mul_i32 s70, s64, %d" % (4 * 6912))
        A("s_lshl_b32 s71, s65, 8")
        A("s_add_u32 s70, s70, s71")
        A("v_lshlrev_b32 v6, 5, v3")
        A("v_lshl_add_u32 v6, v2, 4, v6")
        A("v_add_u32 v6, s70, v6")
        A("s_waitcnt lgkmcnt(0)")
        for i in range(16):
            A(f"v_add_f32 v{96+i}, v{96+i}, v{112+i}")
        self.setexec(0x00ff00ff, 0)
        for b in range(2):
            for mat in range(2):
                d = D[(b, mat)]
                A(f"s_mov_b32 s70, {WS_PA + (b*2+mat)*6912}")
                A(f"buffer_store_dwordx4 v[{d}:{d+3}], v6, s[56:59], s70 offen sc1")
        A("s_mov_b64 exec, -1")
        if self.aux_early:
            A("s_branch L_doneA")
        A("L_noA:")
        if self.aux_early:
            A("s_barrier")
            A("L_doneA:")
        A("s_waitcnt vmcnt(0)")
        A("s_mov_b64 exec, 1")
        A("v_mov_b32 v6, 1")
        A("buffer_atomic_add v6, off, s[52:55], 0 sc1")
        A("s_mov_b64 exec, -1")
        self.stamp(2)
        A("v_mul_u32_u24 v6, 205, v0")
        A("v_lshrrev_b32 v6, 11, v6")
        A("v_mul_u32_u24 v7, 10, v6")
        A("v_sub_u32 v7, v0, v7")
        A("v_mul_u32_u24 v6, 1280, v6")
        A("v_lshl_add_u32 v6, v7, 4, v6")
        A("s_mul_i32 s64, s62, 160")
        A("v_add_u32 v6, s64, v6")
        A("s_mul_i32 s64, s61, %d" % (54 * 1280))
        A("s_mov_b32 s65, s64")
        for i in range(11):
            A(f"s_mov_b32 m0, {L_WD + 960*i}")
            if i == 9:
                A("s_mov_b32 s65, s64")
            else:
                A("s_nop 0")
            A("buffer_load_dwordx4 v6, s[44:47], s65 offen nt lds")
            A("s_add_u32 s65, s65, 7680")
        A("s_mul_i32 s65, s61, %d" % (128 * 1280))
        for i in range(22):
            A(f"s_mov_b32 m0, {L_WO + 960*i}")
            A("s_nop 0")
            A("buffer_load_dwordx4 v6, s[40:43], s65 offen nt lds")
            A("s_add_u32 s65, s65, 7680")
        A("v_lshrrev_b32 v7, 2, v3")
        A("v_lshl_add_u32 v7, v2, 3, v7")
        A("v_mul_u32_u24 v7, 160, v7")
        A("v_and_b32 v8, 3, v3")
        A("v_lshl_add_u32 v7, v8, 3, v7")
        A("s_waitcnt vmcnt(0)")
        WOR = 128
        WDR = 208
        for t in range(5):
            for s in range(2):
                for u in range(2):
                    rg = WDR + (t * 2 + s) * 4 + 2 * u
                    A(f"ds_read_b64_tr_b16 v[{rg}:{rg+1}], v7 offset:{L_WD + (32*s+4*u)*160 + 32*t}")
            A("s_waitcnt lgkmcnt(0)")
        for t in range(5):
            for s in range(4):
                for u in range(2):
                    rg = WOR + (t * 4 + s) * 4 + 2 * u
                    A(f"ds_read_b64_tr_b16 v[{rg}:{rg+1}], v7 offset:{L_WO + (32*s+4*u)*160 + 32*t}")
            A("s_waitcnt lgkmcnt(0)")
        self.stamp(3)
        A("L_pollA:")
        A("buffer_load_dword v6, off, s[52:55], 0 sc1")
        A("s_waitcnt vmcnt(0)")
        A("v_readfirstlane_b32 s64, v6")
        A("s_cmp_ge_u32 s64, 256")
        A("s_cbranch_scc1 L_gotA")
        A("s_sleep 4")
        A("s_sub_u32 s98, s98, 1")
        A("s_cbranch_scc0 L_pollA")
        A("L_gotA:")
        self.stamp(4)
        A("v_min_u32 v6, 53, v0")
        A("s_mul_i32 s64, s61, 54")
        A("v_add_u32 v6, s64, v6")
        A("v_lshlrev_b32 v6, 2, v6")
        A(f"s_mov_b32 s64, {WS_PA}")
        for i in range(32):
            A(f"buffer_load_dword v{12+i}, v6, s[56:59], s64 offen sc1")
            A("s_add_u32 s64, s64, 6912")
        A("v_and_b32 v9, 1, v0")
        A("v_lshlrev_b32 v9, 8, v9")
        A("v_lshl_add_u32 v9, v2, 4, v9")
        A("v_lshlrev_b32 v8, 1, v0")
        A("v_cmp_gt_u32 vcc, 54, v0")
        A("s_waitcnt vmcnt(0)")
        for q in range(4):
            for rg in range(1, 8):
                A(f"v_add_f32 v{12+q}, v{12+q}, v{12+4*rg+q}")
        for q in range(4):
            self.bf16r(12 + q, 12 + q)
        A("v_mul_f32 v12, v12, v13")
        A("v_mul_f32 v14, v14, v15")
        A("v_cvt_pk_bf16_f32 v12, v12, v12")
        A("v_cvt_pk_bf16_f32 v14, v14, v14")
        A("v_cndmask_b32 v12, 0, v12, vcc")
        A("v_cndmask_b32 v14, 0, v14, vcc")
        A(f"ds_write_b16 v8, v12 offset:{L_HB}")
        A(f"ds_write_b16 v8, v14 offset:{L_HB+256}")
        A("s_waitcnt lgkmcnt(0)")
        A(f"ds_read_b128 v[12:15], v9 offset:{L_HB}")
        A(f"ds_read_b128 v[16:19], v9 offset:{L_HB+64}")
        A("s_waitcnt lgkmcnt(0)")
        for s in range(2):
            for t in range(5):
                d = 20 + 4 * t
                w = WDR + (t * 2 + s) * 4
                c = "0" if s == 0 else f"v[{d}:{d+3}]"
                A(f"v_mfma_f32_16x16x32_bf16 v[{d}:{d+3}], v[{w}:{w+3}], v[{12+4*s}:{15+4*s}], {c}")
        self.nop(8)
        for i in range(20):
            A(f"v_min_u32 v{20+i}, -2, v{20+i}")
        A("s_mov_b64 exec, s[66:67]")
        for t in range(5):
            A(f"buffer_store_dwordx4 v[{20+4*t}:{23+4*t}], v5, s[56:59], s68 offen offset:{64*t} sc1")
        A("s_mov_b64 exec, -1")
        self.stamp(5)
        A("s_lshr_b32 s64, s61, 2")
        A("s_and_b32 s65, s61, 1")
        A("s_sub_u32 s64, s64, s62")
        A("s_or_b32 s64, s64, s65")
        A("s_cmp_eq_u32 s64, 0")
        A("s_cselect_b32 s63, 1, 0")
        A("v_lshrrev_b32 v10, 5, v0")
        A("v_and_b32 v11, 31, v0")
        A("s_bfe_u32 s64, s61, 0x10001")
        A("s_lshl_b32 s65, s62, 1")
        A("s_add_u32 s65, s65, s64")
        A("s_mul_i32 s65, s65, 12288")
        A("v_min_u32 v40, 19, v11")
        A("v_mul_u32_u24 v41, 384, v10")
        A("v_lshl_add_u32 v41, v40, 4, v41")
        A("v_add_u32 v41, s65, v41")
        A("s_mul_i32 s64, s64, 1280")
        A("s_mul_i32 s65, s62, 160")
        A("s_add_u32 s64, s64, s65")
        A("v_lshlrev_b32 v42, 3, v40")
        A("v_add_u32 v42, s64, v42")

        def poll32(label, base):
            A(f"s_mov_b32 s64, {base}")
            A(f"s_mov_b32 s65, {base+4608}")
            A(f"s_mov_b32 s70, {base+9216}")
            A(f"{label}:")
            for kk in range(16):
                so = ("s64", "s65", "s70")[kk // 6]
                A(f"buffer_load_dwordx4 v[{48+4*kk}:{51+4*kk}], v41, s[56:59], {so} offen offset:{768*(kk%6)} sc1")
            A("s_waitcnt vmcnt(0)")
            A("v_max3_u32 v43, v48, v49, v50")
            for i in range(51, 111, 2):
                A(f"v_max3_u32 v43, v43, v{i}, v{i+1}")
            A("v_max_u32 v43, v43, v111")
            A("v_cmp_eq_u32 vcc, -1, v43")
            A(f"s_cbranch_vccz {label}_ok")
            A("s_sub_u32 s98, s98, 1")
            A(f"s_cbranch_scc0 {label}")
            A(f"{label}_ok:")
            for lvl in (32, 16, 8, 4):
                for i in range(lvl):
                    A(f"v_add_f32 v{48+i}, v{48+i}, v{48+lvl+i}")
            for k in range(4):
                A(f"v_mov_b32 v{44+k}, v{48+k}")
            self.nop(1)
            for k in range(4):
                A(f"v_permlane32_swap_b32 v{44+k}, v{48+k}")
            self.nop(1)
            for k in range(4):
                A(f"v_add_f32 v{44+k}, v{44+k}, v{48+k}")

        A("s_cmp_eq_u32 s63, 0")
        A("s_cbranch_scc1 L_noG")
        A("buffer_load_dwordx2 v[112:113], v42, s[28:31], 0 offen")
        poll32("L_pollG", WS_G)
        for k in range(4):
            self.bf16r(44 + k, 44 + k)
        for k in range(4):
            A(f"v_mul_f32 v{48+k}, {0xBFB8AA3B:#x}, v{44+k}")
        for k in range(4):
            A(f"v_exp_f32 v{48+k}, v{48+k}")
        for k in range(4):
            A(f"v_add_f32 v{48+k}, 1.0, v{48+k}")
        for k in range(4):
            A(f"v_rcp_f32 v{48+k}, v{48+k}")
        for k in range(4):
            A(f"v_mul_f32 v{116+k}, v{44+k}, v{48+k}")
        for k in range(4):
            self.bf16r(116 + k, 116 + k)
        A("v_lshlrev_b32 v120, 16, v112")
        A("v_and_b32 v121, 0xffff0000, v112")
        A("v_lshlrev_b32 v122, 16, v113")
        A("v_and_b32 v123, 0xffff0000, v113")
        A("L_noG:")
        self.stamp(6)
        A("s_mul_i32 s64, s61, 5120")
        A(f"s_add_u32 s64, s64, {WS_OP:#x}")
        A("v_mul_u32_u24 v6, 640, v10")
        A("v_lshl_add_u32 v6, v11, 4, v6")
        A("v_add_u32 v6, s64, v6")
        A("v_and_b32 v7, 7, v0")
        A("v_xor_b32 v7, v7, v10")
        A("v_mul_u32_u24 v7, 640, v7")
        A("v_add_u32 v7, s64, v7")
        A("v_lshlrev_b32 v8, 4, v11")
        A("v_lshlrev_b32 v40, 3, v11")
        A("v_lshl_add_u32 v40, v10, 8, v40")
        A(f"s_mov_b32 s71, {LOG2E:#x}")
        A("s_mov_b32 s64, 0")
        A("s_mov_b32 s65, 1")
        A("v_mov_b32 v1, 0")
        A("s_setprio 0")
        A("L_waitS:")
        A(f"ds_read_b32 v12, v1 offset:{L_CNT}")
        A("s_waitcnt lgkmcnt(0)")
        A("v_readfirstlane_b32 s70, v12")
        A("s_cmp_ge_u32 s70, 4")
        A("s_cbranch_scc1 L_gotS")
        A("s_sleep 1")
        A("s_sub_u32 s99, s99, 1")
        A("s_cbranch_scc0 L_waitS")
        A("L_gotS:")
        A("s_setprio 3")
        self.stamp(7)
        A(f"ds_read_b128 v[12:15], v1 offset:{L_ML}")
        A(f"ds_read_b128 v[16:19], v1 offset:{L_ML+16}")
        for w in range(4):
            A(f"ds_read_b128 v[{20+4*w}:{23+4*w}], v8 offset:{L_OP+512*w}")
        A("s_waitcnt lgkmcnt(4)")
        A("v_max3_f32 v36, v12, v14, v16")
        A("v_max_f32 v36, v36, v18")
        for w in range(4):
            A(f"v_sub_f32 v{12+2*w}, v{12+2*w}, v36")
        for w in range(4):
            A(f"v_mul_f32 v{12+2*w}, s71, v{12+2*w}")
        for w in range(4):
            A(f"v_exp_f32 v{12+2*w}, v{12+2*w}")
        self.nop(1)
        A("v_mul_f32 v37, v12, v13")
        for w in range(1, 4):
            A(f"v_fmac_f32 v37, v{12+2*w}, v{13+2*w}")
        A("s_waitcnt lgkmcnt(0)")
        for k in range(4):
            A(f"v_mul_f32 v{20+k}, v12, v{20+k}")
        for w in range(1, 4):
            for k in range(4):
                A(f"v_fmac_f32 v{20+k}, v{12+2*w}, v{20+4*w+k}")
        A("v_cndmask_b32 v20, v20, v36, s[64:65]")
        A("v_cndmask_b32 v21, v21, v37, s[64:65]")
        for k in range(4):
            A(f"v_min_u32 v{20+k}, -2, v{20+k}")
        self.setexec(0xffffffff, 1)
        A("buffer_store_dwordx4 v[20:23], v4, s[56:59], 0 offen sc1")
        A("s_mov_b64 exec, -1")
        self.stamp(8)
        A("L_pollO:")
        A("buffer_load_dwordx2 v[28:29], v7, s[56:59], 0 offen offset:512 sc1")
        for kk in range(4):
            A(f"buffer_load_dwordx4 v[{48+4*kk}:{51+4*kk}], v6, s[56:59], 0 offen offset:{1280*kk} sc1")
        A("s_waitcnt vmcnt(0)")
        A("v_max3_u32 v43, v28, v29, v48")
        for i in range(49, 63, 2):
            A(f"v_max3_u32 v43, v43, v{i}, v{i+1}")
        A("v_max_u32 v43, v43, v63")
        A("v_cmp_eq_u32 vcc, -1, v43")
        A("s_cbranch_vccz L_pollO_ok")
        A("s_sub_u32 s98, s98, 1")
        A("s_cbranch_scc0 L_pollO")
        A("L_pollO_ok:")
        self.stamp(9)
        A("v_max_f32_dpp v30, v28, v28 quad_perm:[1,0,3,2] row_mask:0xf bank_mask:0xf")
        self.nop(2)
        A("v_max_f32_dpp v30, v30, v30 quad_perm:[2,3,0,1] row_mask:0xf bank_mask:0xf")
        A("v_sub_f32 v30, v28, v30")
        A("v_mul_f32 v30, s71, v30")
        A("v_exp_f32 v30, v30")
        self.nop(1)
        A("v_mul_f32 v31, v30, v29")
        self.nop(2)
        A("v_add_f32_dpp v31, v31, v31 quad_perm:[1,0,3,2] row_mask:0xf bank_mask:0xf")
        self.nop(2)
        A("v_add_f32_dpp v31, v31, v31 quad_perm:[2,3,0,1] row_mask:0xf bank_mask:0xf")
        A("v_rcp_f32 v31, v31")
        self.nop(1)
        A("v_mul_f32 v30, v30, v31")
        self.nop(2)
        for b in range(2):
            for k in range(4):
                A(f"v_mul_f32_dpp v{12+4*b+k}, v30, v{48+8*b+k} row_newbcast:{4*b} row_mask:0xf bank_mask:0xf")
            for k in range(4):
                A(f"v_fmac_f32_dpp v{12+4*b+k}, v30, v{52+8*b+k} row_newbcast:{4*b+2} row_mask:0xf bank_mask:0xf")
        self.nop(1)
        for k in range(4):
            A(f"v_permlane32_swap_b32 v{12+k}, v{16+k}")
        self.nop(1)
        for k in range(4):
            A(f"v_add_f32 v{12+k}, v{12+k}, v{16+k}")
        A("v_cvt_pk_bf16_f32 v12, v12, v13")
        A("v_cvt_pk_bf16_f32 v13, v14, v15")
        A(f"ds_write_b64 v40, v[12:13] offset:{L_HB}")
        A("s_waitcnt lgkmcnt(0)")
        for s in range(4):
            A(f"ds_read_b128 v[{12+4*s}:{15+4*s}], v9 offset:{L_HB+64*s}")
        for s in range(4):
            A(f"s_waitcnt lgkmcnt({3-s})")
            for t in range(5):
                d = 48 + 4 * t
                w = WOR + (t * 4 + s) * 4
                c = "0" if s == 0 else f"v[{d}:{d+3}]"
                A(f"v_mfma_f32_16x16x32_bf16 v[{d}:{d+3}], v[{w}:{w+3}], v[{12+4*s}:{15+4*s}], {c}")
        self.nop(4)
        A("s_mov_b64 exec, s[66:67]")
        for t in range(5):
            for k in range(4):
                A(f"v_min_u32 v{48+4*t+k}, -2, v{48+4*t+k}")
            A(f"buffer_store_dwordx4 v[{48+4*t}:{51+4*t}], v5, s[56:59], s69 offen offset:{64*t} sc1")
        A("s_mov_b64 exec, -1")
        self.stamp(10)
        A("s_cmp_eq_u32 s63, 0")
        A("s_cbranch_scc1 L_auxdone")
        poll32("L_pollY", WS_Y)
        self.stamp(11)
        for k in range(4):
            self.bf16r(44 + k, 44 + k)
        for k in range(4):
            A(f"v_mul_f32 v{44+k}, v{44+k}, v{116+k}")
        for k in range(4):
            self.bf16r(44 + k, 44 + k)
        for k in range(4):
            A(f"v_add_f32 v{44+k}, v{44+k}, v{120+k}")
        A("v_cvt_pk_bf16_f32 v44, v44, v45")
        A("v_cvt_pk_bf16_f32 v45, v46, v47")
        self.setexec(0xfffff, 0)
        A("buffer_store_dwordx2 v[44:45], v42, s[48:51], 0 offen")
        A("L_auxdone:")
        if self.stamps:
            A("s_waitcnt vmcnt(0)")
        self.stamp(12)
        self.dump_stamps(13)

    def text(self):
        self.build()
        out = [HEADER.rstrip("\n")]
        out.append(f"; @launch grid=(256,1,1) block=(320,1,1) lds={L_END}")
        out.append('.amdgcn_target "amdgcn-amd-amdhsa--gfx950"')
        out += [".text", f".globl {KNAME}", ".p2align 8", f".type {KNAME},@function", f"{KNAME}:"]
        out += self.L
        out += ['.section .rodata,"a"', ".p2align 6", f".amdhsa_kernel {KNAME}",
                "  .amdhsa_next_free_vgpr 256", "  .amdhsa_next_free_sgpr 102", "  .amdhsa_accum_offset 256",
                "  .amdhsa_group_segment_fixed_size 0", "  .amdhsa_kernarg_size 96", "  .amdhsa_user_sgpr_count 2",
                "  .amdhsa_user_sgpr_kernarg_segment_ptr 1", "  .amdhsa_system_sgpr_workgroup_id_x 1",
                "  .amdhsa_float_denorm_mode_32 3",
                ".end_amdhsa_kernel"]
        return "\n".join(out) + "\n"


if __name__ == "__main__":
    import argparse, ast
    ap = argparse.ArgumentParser()
    ap.add_argument("out")
    ap.add_argument("opts", nargs="*")
    a = ap.parse_args()
    kw = {}
    for o in a.opts:
        k, v = o.split("=", 1)
        try:
            v = ast.literal_eval(v)
        except Exception:
            pass
        kw[k] = v
    t = Gen(**kw).text()
    open(a.out, "w").write(t)
    sys.path.insert(0, "gen")
    import lint
    r = lint.lint(t)
    print("\n".join(r) if r else "lint clean")
```

```python
import sys
KNAME = "recurrent_scan__mha_block_cached__glu_gated_bilinear__decode_kernel"
HEADER = open("recurrent_scan__mha_block_cached__glu_gated_bilinear__decode.s.ref").read().split("; Override launch")[0]

WS_PA = 0x00000
WS_OP = 0x40000
WS_G = 0x70000
WS_Y = 0xA0000
WS_ST = 0x100000
WS_SIZE = 0x200000
L_QP = 0x0000
L_OP = 0x0800
L_ML = 0x1000
L_CNT = 0x1040
L_HB = 0x1100
L_SC = 0x1400
L_WO = 0x5400
L_WD = L_WO + 21504
L_END = L_WD + 11264
LOG2E = 0x3FB8AA3B
SCALE = 0x3DB504F3
INV640 = 0x3ACCCCCD
EPS = 0x3727C5AC


class Gen:
    def __init__(self, stamps=False, pattern="g4b4", wq_flags="", aux_early=False, kvflags="nt", vflags=None, mix=(5, 2), dbgst=False):
        self.L = []
        self.stamps = stamps or dbgst
        self.dbgst = dbgst
        self.pattern = pattern
        self.wq_flags = wq_flags
        self.aux_early = aux_early
        self.kvflags = kvflags
        self.vflags = kvflags if vflags is None else vflags
        self.mix = mix
        self.nst = 0

    def A(self, s):
        self.L.append("    " + s if not s.endswith(":") else s)

    def nop(self, n):
        while n > 0:
            k = min(n, 16)
            self.A(f"s_nop {k-1}")
            n -= k

    def stamp(self, idx):
        if self.stamps:
            self.A(f"s_memrealtime s[{72+2*idx}:{73+2*idx}]")

    def setexec(self, lo, hi):
        self.A(f"s_mov_b32 exec_lo, {lo:#x}")
        self.A(f"s_mov_b32 exec_hi, {hi:#x}")

    def srd(self, d, p, size):
        self.A(f"s_mov_b32 s{d}, s{p}")
        self.A(f"s_and_b32 s{d+1}, s{p+1}, 0xffff")
        self.A(f"s_mov_b32 s{d+2}, {size:#x}")
        self.A(f"s_mov_b32 s{d+3}, 0x20000")

    def wave_reduce(self, op, r, t):
        A = self.A
        for sh in (8, 4, 2, 1):
            self.nop(2)
            A(f"{op}_dpp v{r}, v{r}, v{r} row_ror:{sh} row_mask:0xf bank_mask:0xf")
        for sw in ("v_permlane16_swap_b32", "v_permlane32_swap_b32"):
            A(f"v_mov_b32 v{t}, v{r}")
            self.nop(2)
            A(f"{sw} v{r}, v{t}")
            self.nop(1)
            A(f"{op} v{r}, v{r}, v{t}")

    def bf16r(self, d, s):
        self.A(f"v_cvt_pk_bf16_f32 v{d}, v{s}, v{s}")
        self.A(f"v_and_b32 v{d}, 0xffff0000, v{d}")

    def unpack10(self, raw, out):
        for e in range(10):
            if e % 2 == 0:
                self.A(f"v_lshlrev_b32 v{out+e}, 16, v{raw+e//2}")
            else:
                self.A(f"v_and_b32 v{out+e}, 0xffff0000, v{raw+e//2}")

    def ln_stats(self, x, mb, rs, t0, t1):
        A = self.A
        A(f"v_add_f32 v{mb}, v{x}, v{x+1}")
        for e in range(2, 10):
            A(f"v_add_f32 v{mb}, v{mb}, v{x+e}")
        self.wave_reduce("v_add_f32", mb, t0)
        A(f"v_mul_f32 v{mb}, {INV640:#x}, v{mb}")
        A(f"v_sub_f32 v{t0}, v{x}, v{mb}")
        A(f"v_mul_f32 v{rs}, v{t0}, v{t0}")
        for e in range(1, 10):
            A(f"v_sub_f32 v{t0}, v{x+e}, v{mb}")
            A(f"v_fmac_f32 v{rs}, v{t0}, v{t0}")
        self.wave_reduce("v_add_f32", rs, t0)
        A(f"v_mul_f32 v{rs}, {INV640:#x}, v{rs}")
        self.bf16r(mb, mb)
        self.bf16r(rs, rs)
        A(f"v_add_f32 v{rs}, {EPS:#x}, v{rs}")
        self.bf16r(rs, rs)
        A(f"v_sqrt_f32 v{rs}, v{rs}")
        self.nop(1)
        self.bf16r(rs, rs)
        A(f"v_rcp_f32 v{rs}, v{rs}")
        self.nop(1)

    def ln_apply(self, x, mb, rs):
        A = self.A
        for e in range(10):
            A(f"v_sub_f32 v{x+e}, v{x+e}, v{mb}")
        for e in range(10):
            self.bf16r(x + e, x + e)
        for e in range(10):
            A(f"v_mul_f32 v{x+e}, v{x+e}, v{rs}")
        for e in range(10):
            A(f"v_cvt_pk_bf16_f32 v{x+e}, v{x+e}, v{x+e}")

    def dump_stamps(self, nst):
        if not self.stamps:
            return
        A = self.A
        A("s_waitcnt lgkmcnt(0)")
        if self.dbgst:
            self.srd(52, 24, 256)
            A("s_mov_b64 exec, 1")
            sel = [(1, 0, True), (2, 4, False), (3, 5, False), (4, 7, False), (5, 4, True), (6, 5, True), (7, 7, True)] if nst == 8 else \
                  [(8, 2, False), (9, 5, False), (10, 7, False), (11, 9, False), (12, 10, False), (13, 12, False)]
            for slot, st, inv in sel:
                if inv:
                    A(f"s_not_b32 s64, s{72+2*st}")
                    A("v_mov_b32 v1, s64")
                else:
                    A(f"v_mov_b32 v1, s{72+2*st}")
                A(f"buffer_atomic_umax v1, off, s[52:55], 0 offset:{4*slot} sc1")
                A("s_nop 1")
            return
        self.srd(56, 26, WS_SIZE)
        A("s_mul_i32 s64, s2, 5")
        A("s_add_u32 s64, s64, s60")
        A("s_lshl_b32 s64, s64, 6")
        A(f"s_add_u32 s64, s64, {WS_ST:#x}")
        A("s_mov_b64 exec, 1")
        A("v_mov_b32 v1, s64")
        for i in range(nst):
            A(f"v_mov_b32 v{4+i}, s{72+2*i}")
        for i in range(nst, 15):
            A(f"v_mov_b32 v{4+i}, 0")
        A("s_getreg_b32 s65, hwreg(HW_REG_XCC_ID)")
        A("v_mov_b32 v19, s65")
        for q in range(4):
            A(f"buffer_store_dwordx4 v[{4+4*q}:{7+4*q}], v1, s[56:59], 0 offen offset:{16*q}")

    def build(self):
        A = self.A
        NB = 8
        A(f"s_cmp_ge_u32 s2, 256")
        A("s_cbranch_scc1 L_end")
        self.stamp(0)
        A("s_load_dwordx16 s[4:19], s[0:1], 0")
        A("s_load_dwordx8 s[20:27], s[0:1], 64")
        A("v_lshrrev_b32 v1, 6, v0")
        A("v_and_b32 v0, 63, v0")
        A("v_readfirstlane_b32 s60, v1")
        A("s_and_b32 s61, s2, 7")
        A("s_lshl_b32 s61, s61, 2")
        A("s_bfe_u32 s64, s2, 0x20003")
        A("s_add_u32 s61, s61, s64")
        A("s_lshr_b32 s62, s2, 5")
        A("s_lshr_b32 s63, s2, 7")
        A("s_cmp_eq_u32 s60, 0")
        A("s_cbranch_scc1 L_aux")
        self.stream(NB)
        A("L_aux:")
        self.aux()
        A("L_end:")
        A("s_endpgm")

    def stream(self, NB):
        A = self.A
        SA, SB = 128, 192
        XD = 20
        A("s_sub_u32 s64, s60, 1")
        A("v_lshrrev_b32 v30, 4, v0")
        A("v_and_b32 v31, 15, v0")
        A("s_lshl_b32 s65, s64, 2")
        A("v_add_u32 v3, s65, v31")
        A("v_and_b32 v3, 15, v3")
        A("v_mul_u32_u24 v3, 20, v3")
        A("v_mul_u32_u24 v2, 320, v30")
        A("s_mul_i32 s66, s63, 1280")
        A("v_add3_u32 v3, v3, v2, s66")
        A("s_mul_i32 s65, s64, %d" % (40 * 8192))
        A("s_lshl_b32 s66, s61, 8")
        A("s_add_u32 s65, s65, s66")
        A("s_mov_b32 s66, %d" % (160 * 8192))
        A("v_mul_lo_u32 v2, v30, s66")
        A("v_lshl_add_u32 v2, v31, 4, v2")
        A("v_add_u32 v2, s65, v2")
        A("s_lshl_b32 s65, s63, 5")
        A("s_add_u32 s65, s65, s61")
        A("s_lshl_b32 s65, s65, 21")
        A("s_and_b32 s66, s62, 3")
        A("s_lshl_b32 s66, s66, 2")
        A("s_add_u32 s66, s66, s64")
        if self.pattern == "g4b4":
            A("s_lshl_b32 s66, s66, 12")
            SUBSTEP = 65536
        elif self.pattern == "contig":
            A("s_lshl_b32 s66, s66, 17")
            SUBSTEP = 4096
        else:
            raise ValueError
        A("s_add_u32 s65, s65, s66")
        A("v_lshlrev_b32 v1, 4, v0")
        A("v_add_u32 v1, s65, v1")
        A("s_waitcnt lgkmcnt(0)")
        self.srd(28, 4, 2560)
        A("buffer_load_dwordx4 v[8:11], v3, s[28:31], 0 offen")
        A("buffer_load_dword v12, v3, s[28:31], 0 offen offset:16")
        self.srd(36, 10, 640 * 4096 * 2)
        self.srd(32, 6, 0x8000000)
        A("s_mov_b32 s67, 0")
        A("s_mov_b32 s68, 0")

        def wqreg(n):
            return 32 + 4 * n if n < 24 else SB + 4 * (n - 24)

        issued = ["x0", "x1"]

        def kload(slot, r, fl=None):
            reg = slot + 4 * r
            fl = self.kvflags if fl is None else fl
            A(f"buffer_load_dwordx4 v[{reg}:{reg+3}], v1, s[32:35], s68 offen offset:{(r&3)*1024} {fl}")
            if r & 3 == 3:
                A(f"s_add_u32 s68, s68, {SUBSTEP}")

        a, b_ = self.mix
        n = 0
        r = 0
        while n < 40 or r < 16:
            for _ in range(a):
                if n < 40:
                    reg = wqreg(n)
                    A(f"buffer_load_dwordx4 v[{reg}:{reg+3}], v2, s[36:39], s67 offen {self.wq_flags}")
                    A("s_add_u32 s67, s67, 8192")
                    issued.append(f"w{n}")
                    n += 1
            for _ in range(b_):
                if r < 16:
                    kload(SA, r)
                    issued.append(f"a{r}")
                    r += 1
        self.stamp(1)
        A("v_and_b32 v16, 1, v31")
        A("v_lshlrev_b32 v16, 4, v16")
        A("v_mov_b32 v17, 0xffff")
        A("v_lshlrev_b32 v16, v16, v17")
        A("v_lshrrev_b32 v17, 1, v31")
        for k in range(4):
            A(f"v_cmp_eq_u32 vcc, {k}, v17")
            self.nop(2)
            A(f"v_cndmask_b32 v{4+k}, 0, v16, vcc")
        A("s_mov_b32 s40, 0xcccccccc")
        A("s_mov_b32 s41, 0xcccccccc")
        A("s_mov_b32 s42, 0xaaaaaaaa")
        A("s_mov_b32 s43, 0xaaaaaaaa")

        def wait_for(tag):
            A(f"s_waitcnt vmcnt({len(issued)-1-issued.index(tag)})")

        wait_for("x1")
        self.stamp(2)
        self.unpack10(8, XD)
        self.ln_stats(XD, 13, 14, 15, 16)
        self.ln_apply(XD, 13, 14)
        self.nop(2)

        def mkA(aset, src, lane):
            for k in range(4):
                A(f"v_and_b32_dpp v{aset+k}, v{src}, v{4+k} row_newbcast:{lane} row_mask:0xf bank_mask:0xf")

        mkA(8, XD + 0, 0)
        for n in range(40):
            cur = 8 + 4 * (n & 1)
            if n + 1 < 40:
                mkA(8 + 4 * ((n + 1) & 1), XD + (n + 1) % 10, (n + 1) // 10)
            else:
                self.nop(2)
            wait_for(f"w{n}")
            reg = wqreg(n)
            c = "0" if n == 0 else "v[16:19]"
            A(f"v_mfma_f32_16x16x32_bf16 v[16:19], v[{cur}:{cur+3}], v[{reg}:{reg+3}], {c}")
            if n >= 24:
                kload(SB, n - 24)
                issued.append(f"b{n-24}")
        self.stamp(3)
        A("v_lshlrev_b32 v3, 5, v31")
        A("v_lshl_add_u32 v3, v30, 4, v3")
        A("s_lshl_b32 s65, s64, 9")
        A("v_add_u32 v3, s65, v3")
        self.nop(5)
        self.setexec(0xffffffff, 0)
        A(f"ds_write_b128 v3, v[16:19] offset:{L_QP}")
        A("s_mov_b64 exec, -1")
        A("s_waitcnt lgkmcnt(0)")
        A("s_barrier")
        A("v_lshlrev_b32 v2, 5, v31")
        for w in range(4):
            A(f"ds_read_b128 v[{32+8*w}:{35+8*w}], v2 offset:{L_QP+512*w}")
            A(f"ds_read_b128 v[{36+8*w}:{39+8*w}], v2 offset:{L_QP+512*w+16}")
        A("s_lshl_b32 s65, s64, 12")
        A("v_lshlrev_b32 v29, 2, v0")
        A("v_add_u32 v29, s65, v29")
        A("v_mov_b32 v24, 0xff800000")
        A("v_mov_b32 v25, 0")
        A("s_waitcnt lgkmcnt(0)")
        for e in range(8):
            A(f"v_add_f32 v{32+e}, v{32+e}, v{40+e}")
            A(f"v_add_f32 v{48+e}, v{48+e}, v{56+e}")
        for e in range(8):
            A(f"v_add_f32 v{32+e}, v{32+e}, v{48+e}")
        for k in range(4):
            A(f"v_cvt_pk_bf16_f32 v{20+k}, v{32+2*k}, v{33+2*k}")
        self.stamp(4)
        A("s_mov_b32 s69, 2")
        A("v_mov_b32 v28, v29")
        P = 32

        def switch_stream():
            lab = f"L_sw{self.nst}"
            self.nst += 1
            A(f"s_cmp_lg_u32 s69, {NB}")
            A(f"s_cbranch_scc1 {lab}")
            A("s_mov_b32 s32, s8")
            A("s_and_b32 s33, s9, 0xffff")
            A("s_mov_b32 s68, 0")
            A(f"{lab}:")
            A("s_add_u32 s69, s69, 1")

        def kblock(slot):
            switch_stream()
            for r in range(16):
                reg = slot + 4 * r
                A("s_waitcnt vmcnt(31)")
                A(f"v_dot2_f32_bf16 v{P+r}, v{reg}, v20, 0")
                for k in range(1, 4):
                    A(f"v_dot2_f32_bf16 v{P+r}, v{reg+k}, v{20+k}, v{P+r}")
                kload(slot, r)
            for r in range(8):
                A(f"v_add_f32_dpp v{P+r}, v{P+r}, v{P+r} row_ror:8 row_mask:0xf bank_mask:0x3")
                A(f"v_add_f32_dpp v{P+r}, v{P+r+8}, v{P+r+8} row_ror:8 row_mask:0xf bank_mask:0xc")
            for r in range(4):
                A(f"v_add_f32_dpp v{P+r}, v{P+r}, v{P+r} row_shl:4 row_mask:0xf bank_mask:0x5")
                A(f"v_add_f32_dpp v{P+r}, v{P+r+4}, v{P+r+4} row_shr:4 row_mask:0xf bank_mask:0xa")
            self.nop(1)
            for r in range(4):
                A(f"v_add_f32_dpp v{P+r}, v{P+r}, v{P+r} quad_perm:[2,3,0,1] row_mask:0xf bank_mask:0xf")
            A(f"v_cndmask_b32 v{P}, v{P}, v{P+2}, s[40:41]")
            A(f"v_cndmask_b32 v{P+1}, v{P+1}, v{P+3}, s[40:41]")
            self.nop(1)
            A(f"v_add_f32_dpp v{P}, v{P}, v{P} quad_perm:[1,0,3,2] row_mask:0xf bank_mask:0xf")
            A(f"v_add_f32_dpp v{P+1}, v{P+1}, v{P+1} quad_perm:[1,0,3,2] row_mask:0xf bank_mask:0xf")
            A(f"v_cndmask_b32 v{P}, v{P}, v{P+1}, s[42:43]")
            self.bf16r(P, P)
            A(f"v_mul_f32 v{P}, {SCALE:#x}, v{P}")
            self.bf16r(P, P)
            A(f"v_max_f32 v24, v24, v{P}")
            A(f"ds_write_b32 v28, v{P} offset:{L_SC}")
            A("v_add_u32 v28, 256, v28")

        A(f"s_mov_b32 s70, {NB//2}")
        A("L_kloop:")
        kblock(SA)
        kblock(SB)
        A("s_sub_u32 s70, s70, 1")
        A("s_cmp_lg_u32 s70, 0")
        A("s_cbranch_scc1 L_kloop")
        self.stamp(5)
        A("s_waitcnt lgkmcnt(0)")
        A(f"ds_read_b32 v27, v29 offset:{L_SC}")
        self.wave_reduce("v_max_f32", 24, 30)
        A(f"v_mul_f32 v28, {LOG2E:#x}, v24")
        A("v_sub_f32 v28, 0, v28")
        A(f"s_mov_b32 s71, {LOG2E:#x}")
        for k in range(4):
            A(f"v_mov_b32 v{16+k}, 0")

        def mkP():
            A("s_waitcnt lgkmcnt(0)")
            A("v_fma_f32 v30, v27, s71, v28")
            A("v_add_u32 v29, 256, v29")
            A("v_exp_f32 v30, v30")
            A(f"ds_read_b32 v27, v29 offset:{L_SC}")
            A("v_add_f32 v25, v25, v30")
            A("v_cvt_pk_bf16_f32 v26, v30, v30")

        def vblock(slot):
            lab = f"L_sw{self.nst}"
            self.nst += 1
            A(f"s_cmp_lg_u32 s69, {2*NB}")
            A(f"s_cbranch_scc1 {lab}")
            A("s_mov_b32 s34, 0")
            A(f"{lab}:")
            A("s_add_u32 s69, s69, 1")
            mkP()
            self.nop(2)
            mkA(8, 26, 0)
            for r in range(16):
                cur = 8 + 4 * (r & 1)
                if r + 1 < 16:
                    mkA(8 + 4 * ((r + 1) & 1), 26, r + 1)
                else:
                    self.nop(1)
                reg = slot + 4 * r
                A("s_waitcnt vmcnt(31)")
                A(f"v_mfma_f32_16x16x32_bf16 v[16:19], v[{cur}:{cur+3}], v[{reg}:{reg+3}], v[16:19]")
                kload(slot, r, self.vflags)

        A(f"s_mov_b32 s70, {NB//2}")
        A("L_vloop:")
        vblock(SA)
        vblock(SB)
        A("s_sub_u32 s70, s70, 1")
        A("s_cmp_lg_u32 s70, 0")
        A("s_cbranch_scc1 L_vloop")
        self.stamp(6)
        self.wave_reduce("v_add_f32", 25, 30)
        self.setexec(0xffffffff, 0)
        A(f"ds_write_b128 v3, v[16:19] offset:{L_OP}")
        A("s_mov_b64 exec, 1")
        A("s_lshl_b32 s65, s64, 3")
        A("v_mov_b32 v2, s65")
        A(f"ds_write_b64 v2, v[24:25] offset:{L_ML}")
        A("v_mov_b32 v2, 0")
        A("v_mov_b32 v30, 1")
        A("s_waitcnt lgkmcnt(0)")
        A(f"ds_add_u32 v2, v30 offset:{L_CNT}")
        self.stamp(7)
        self.dump_stamps(8)
        A("s_endpgm")

    def aux(self):
        A = self.A
        A("s_setprio 3")
        A("s_mov_b32 s98, 0x40000")
        A("s_mov_b32 s99, 0x400000")
        A("v_mov_b32 v1, 0")
        A(f"ds_write_b32 v1, v1 offset:{L_CNT}")
        A("v_lshrrev_b32 v2, 4, v0")
        A("v_and_b32 v3, 15, v0")
        A("s_waitcnt lgkmcnt(0)")
        if not self.aux_early:
            A("s_barrier")
        self.srd(28, 4, 2560)
        self.srd(32, 16, 640 * 1728 * 2)
        self.srd(36, 18, 640 * 1728 * 2)
        self.srd(40, 12, 4096 * 640 * 2)
        self.srd(44, 20, 1728 * 640 * 2)
        self.srd(48, 22, 2560)
        self.srd(52, 24, 256)
        self.srd(56, 26, WS_SIZE)
        self.stamp(1)
        for k in range(4):
            A(f"v_mov_b32 v{8+k}, -1")
        A("s_lshl_b32 s64, s61, 3")
        A("s_add_u32 s64, s64, s62")
        A("s_mul_i32 s64, s64, 640")
        A(f"s_add_u32 s64, s64, {WS_OP:#x}")
        A("v_lshlrev_b32 v4, 4, v0")
        A("v_add_u32 v4, s64, v4")
        self.setexec(0xffffffff, 1)
        A("buffer_store_dwordx4 v[8:11], v4, s[56:59], 0 offen sc1")
        A("s_mov_b64 exec, -1")
        A("s_lshl_b32 s64, s62, 6")
        A("s_add_u32 s64, s64, s61")
        A("s_mul_i32 s64, s64, 384")
        A("v_and_b32 v5, 1, v0")
        A("v_mul_u32_u24 v5, 12288, v5")
        A("v_lshl_add_u32 v5, v2, 4, v5")
        A("v_add_u32 v5, s64, v5")
        A("s_mov_b32 s66, 0x00030003")
        A("s_mov_b32 s67, 0x00030003")
        A(f"s_mov_b32 s68, {WS_G:#x}")
        A(f"s_mov_b32 s69, {WS_Y:#x}")
        A("s_mov_b64 exec, s[66:67]")
        for t in range(5):
            A(f"buffer_store_dwordx4 v[8:11], v5, s[56:59], s68 offen offset:{64*t} sc1")
            A(f"buffer_store_dwordx4 v[8:11], v5, s[56:59], s69 offen offset:{64*t} sc1")
        A("s_mov_b64 exec, -1")
        A("s_cmp_ge_u32 s2, 216")
        A("s_cbranch_scc1 L_noA")
        A("s_mul_i32 s64, s2, 2428")
        A("s_lshr_b32 s64, s64, 16")
        A("s_mul_i32 s65, s64, 27")
        A("s_sub_u32 s65, s2, s65")
        A("v_mul_u32_u24 v6, 20, v0")
        A("buffer_load_dwordx4 v[12:15], v6, s[28:31], 0 offen")
        A("buffer_load_dword v16, v6, s[28:31], 0 offen offset:16")
        A("buffer_load_dwordx4 v[20:23], v6, s[28:31], 0 offen offset:1280")
        A("buffer_load_dword v24, v6, s[28:31], 0 offen offset:1296")
        A("v_lshrrev_b32 v7, 3, v0")
        A("v_mul_u32_u24 v6, 20, v7")
        A("s_mul_i32 s70, s64, 160")
        A("v_add_u32 v6, s70, v6")
        A("buffer_load_dwordx4 v[28:31], v6, s[28:31], 0 offen")
        A("buffer_load_dword v32, v6, s[28:31], 0 offen offset:16")
        A("buffer_load_dwordx4 v[36:39], v6, s[28:31], 0 offen offset:1280")
        A("buffer_load_dword v40, v6, s[28:31], 0 offen offset:1296")
        A("v_mul_u32_u24 v6, 34560, v7")
        A("v_and_b32 v7, 7, v0")
        A("v_lshl_add_u32 v6, v7, 4, v6")
        A("s_mul_i32 s70, s64, %d" % (80 * 3456))
        A("s_lshl_b32 s71, s65, 7")
        A("s_add_u32 s70, s70, s71")
        A("v_add_u32 v6, s70, v6")
        A("s_mov_b32 s70, 0")
        WG0, WU0 = 128, 168
        for r in range(10):
            A(f"buffer_load_dwordx4 v[{WG0+4*r}:{WG0+4*r+3}], v6, s[32:35], s70 offen nt")
            A(f"buffer_load_dwordx4 v[{WU0+4*r}:{WU0+4*r+3}], v6, s[36:39], s70 offen nt")
            A("s_add_u32 s70, s70, 3456")
        if self.aux_early:
            A("s_barrier")
        A("v_and_b32 v44, 1, v3")
        A("v_lshlrev_b32 v44, 4, v44")
        A("v_mov_b32 v45, 0xffff")
        A("v_lshlrev_b32 v44, v44, v45")
        A("v_bfe_u32 v45, v3, 1, 2")
        for k in range(4):
            A(f"v_cmp_eq_u32 vcc, {k}, v45")
            self.nop(2)
            A(f"v_cndmask_b32 v{48+k}, 0, v44, vcc")
        A("s_waitcnt vmcnt(20)")
        X0, X1 = 60, 70
        for (raw, rawA, X) in ((12, 28, X0), (20, 36, X1)):
            self.unpack10(raw, 80)
            self.ln_stats(80, 52, 53, 54, 55)
            self.unpack10(rawA, X)
            self.ln_apply(X, 52, 53)
        D = {(0, 0): 96, (0, 1): 100, (1, 0): 104, (1, 1): 108}
        for r in range(10):
            for b, X in ((0, X0), (1, X1)):
                for k in range(4):
                    A(f"v_and_b32 v{112+4*b+k}, v{X+r}, v{48+k}")
            A(f"s_waitcnt vmcnt({18-2*r})")
            self.nop(1)
            for b in range(2):
                for mat, W in ((0, WG0), (1, WU0)):
                    d = D[(b, mat)]
                    c = "0" if r == 0 else f"v[{d}:{d+3}]"
                    A(f"v_mfma_f32_16x16x32_bf16 v[{d}:{d+3}], v[{112+4*b}:{115+4*b}], v[{W+4*r}:{W+4*r+3}], {c}")
        A("v_add_u32 v6, 40, v0")
        A("v_and_b32 v6, 63, v6")
        A("v_lshlrev_b32 v6, 2, v6")
        self.nop(8)
        for i in range(16):
            A(f"ds_bpermute_b32 v{112+i}, v6, v{96+i}")
        A("s_mul_i32 s70, s64, %d" % (4 * 6912))
        A("s_lshl_b32 s71, s65, 8")
        A("s_add_u32 s70, s70, s71")
        A("v_lshlrev_b32 v6, 5, v3")
        A("v_lshl_add_u32 v6, v2, 4, v6")
        A("v_add_u32 v6, s70, v6")
        A("s_waitcnt lgkmcnt(0)")
        for i in range(16):
            A(f"v_add_f32 v{96+i}, v{96+i}, v{112+i}")
        self.setexec(0x00ff00ff, 0)
        for b in range(2):
            for mat in range(2):
                d = D[(b, mat)]
                A(f"s_mov_b32 s70, {WS_PA + (b*2+mat)*6912}")
                A(f"buffer_store_dwordx4 v[{d}:{d+3}], v6, s[56:59], s70 offen sc1")
        A("s_mov_b64 exec, -1")
        if self.aux_early:
            A("s_branch L_doneA")
        A("L_noA:")
        if self.aux_early:
            A("s_barrier")
            A("L_doneA:")
        A("s_waitcnt vmcnt(0)")
        A("s_mov_b64 exec, 1")
        A("v_mov_b32 v6, 1")
        A("buffer_atomic_add v6, off, s[52:55], 0 sc1")
        A("s_mov_b64 exec, -1")
        self.stamp(2)
        A("v_mul_u32_u24 v6, 205, v0")
        A("v_lshrrev_b32 v6, 11, v6")
        A("v_mul_u32_u24 v7, 10, v6")
        A("v_sub_u32 v7, v0, v7")
        A("v_mul_u32_u24 v6, 1280, v6")
        A("v_lshl_add_u32 v6, v7, 4, v6")
        A("s_mul_i32 s64, s62, 160")
        A("v_add_u32 v6, s64, v6")
        A("s_mul_i32 s64, s61, %d" % (54 * 1280))
        A("s_mov_b32 s65, s64")
        for i in range(11):
            A(f"s_mov_b32 m0, {L_WD + 960*i}")
            if i == 9:
                A("s_mov_b32 s65, s64")
            else:
                A("s_nop 0")
            A("buffer_load_dwordx4 v6, s[44:47], s65 offen nt lds")
            A("s_add_u32 s65, s65, 7680")
        A("s_mul_i32 s65, s61, %d" % (128 * 1280))
        for i in range(22):
            A(f"s_mov_b32 m0, {L_WO + 960*i}")
            A("s_nop 0")
            A("buffer_load_dwordx4 v6, s[40:43], s65 offen nt lds")
            A("s_add_u32 s65, s65, 7680")
        A("v_lshrrev_b32 v7, 2, v3")
        A("v_lshl_add_u32 v7, v2, 3, v7")
        A("v_mul_u32_u24 v7, 160, v7")
        A("v_and_b32 v8, 3, v3")
        A("v_lshl_add_u32 v7, v8, 3, v7")
        A("s_waitcnt vmcnt(0)")
        WOR = 128
        WDR = 208
        for t in range(5):
            for s in range(2):
                for u in range(2):
                    rg = WDR + (t * 2 + s) * 4 + 2 * u
                    A(f"ds_read_b64_tr_b16 v[{rg}:{rg+1}], v7 offset:{L_WD + (32*s+4*u)*160 + 32*t}")
            A("s_waitcnt lgkmcnt(0)")
        for t in range(5):
            for s in range(4):
                for u in range(2):
                    rg = WOR + (t * 4 + s) * 4 + 2 * u
                    A(f"ds_read_b64_tr_b16 v[{rg}:{rg+1}], v7 offset:{L_WO + (32*s+4*u)*160 + 32*t}")
            A("s_waitcnt lgkmcnt(0)")
        self.stamp(3)
        A("L_pollA:")
        A("buffer_load_dword v6, off, s[52:55], 0 sc1")
        A("s_waitcnt vmcnt(0)")
        A("v_readfirstlane_b32 s64, v6")
        A("s_cmp_ge_u32 s64, 256")
        A("s_cbranch_scc1 L_gotA")
        A("s_sleep 4")
        A("s_sub_u32 s98, s98, 1")
        A("s_cbranch_scc0 L_pollA")
        A("L_gotA:")
        self.stamp(4)
        A("v_min_u32 v6, 53, v0")
        A("s_mul_i32 s64, s61, 54")
        A("v_add_u32 v6, s64, v6")
        A("v_lshlrev_b32 v6, 2, v6")
        A(f"s_mov_b32 s64, {WS_PA}")
        for i in range(32):
            A(f"buffer_load_dword v{12+i}, v6, s[56:59], s64 offen sc1")
            A("s_add_u32 s64, s64, 6912")
        A("v_and_b32 v9, 1, v0")
        A("v_lshlrev_b32 v9, 8, v9")
        A("v_lshl_add_u32 v9, v2, 4, v9")
        A("v_lshlrev_b32 v8, 1, v0")
        A("v_cmp_gt_u32 vcc, 54, v0")
        A("s_waitcnt vmcnt(0)")
        for q in range(4):
            for rg in range(1, 8):
                A(f"v_add_f32 v{12+q}, v{12+q}, v{12+4*rg+q}")
        for q in range(4):
            self.bf16r(12 + q, 12 + q)
        A("v_mul_f32 v12, v12, v13")
        A("v_mul_f32 v14, v14, v15")
        A("v_cvt_pk_bf16_f32 v12, v12, v12")
        A("v_cvt_pk_bf16_f32 v14, v14, v14")
        A("v_cndmask_b32 v12, 0, v12, vcc")
        A("v_cndmask_b32 v14, 0, v14, vcc")
        A(f"ds_write_b16 v8, v12 offset:{L_HB}")
        A(f"ds_write_b16 v8, v14 offset:{L_HB+256}")
        A("s_waitcnt lgkmcnt(0)")
        A(f"ds_read_b128 v[12:15], v9 offset:{L_HB}")
        A(f"ds_read_b128 v[16:19], v9 offset:{L_HB+64}")
        A("s_waitcnt lgkmcnt(0)")
        for s in range(2):
            for t in range(5):
                d = 20 + 4 * t
                w = WDR + (t * 2 + s) * 4
                c = "0" if s == 0 else f"v[{d}:{d+3}]"
                A(f"v_mfma_f32_16x16x32_bf16 v[{d}:{d+3}], v[{w}:{w+3}], v[{12+4*s}:{15+4*s}], {c}")
        self.nop(8)
        for i in range(20):
            A(f"v_min_u32 v{20+i}, -2, v{20+i}")
        A("s_mov_b64 exec, s[66:67]")
        for t in range(5):
            A(f"buffer_store_dwordx4 v[{20+4*t}:{23+4*t}], v5, s[56:59], s68 offen offset:{64*t} sc1")
        A("s_mov_b64 exec, -1")
        self.stamp(5)
        A("s_lshr_b32 s64, s61, 2")
        A("s_and_b32 s65, s61, 1")
        A("s_sub_u32 s64, s64, s62")
        A("s_or_b32 s64, s64, s65")
        A("s_cmp_eq_u32 s64, 0")
        A("s_cselect_b32 s63, 1, 0")
        A("v_lshrrev_b32 v10, 5, v0")
        A("v_and_b32 v11, 31, v0")
        A("s_bfe_u32 s64, s61, 0x10001")
        A("s_lshl_b32 s65, s62, 1")
        A("s_add_u32 s65, s65, s64")
        A("s_mul_i32 s65, s65, 12288")
        A("v_min_u32 v40, 19, v11")
        A("v_mul_u32_u24 v41, 384, v10")
        A("v_lshl_add_u32 v41, v40, 4, v41")
        A("v_add_u32 v41, s65, v41")
        A("s_mul_i32 s64, s64, 1280")
        A("s_mul_i32 s65, s62, 160")
        A("s_add_u32 s64, s64, s65")
        A("v_lshlrev_b32 v42, 3, v40")
        A("v_add_u32 v42, s64, v42")

        def poll32(label, base):
            A(f"s_mov_b32 s64, {base}")
            A(f"s_mov_b32 s65, {base+4608}")
            A(f"s_mov_b32 s70, {base+9216}")
            A(f"{label}:")
            for kk in range(16):
                so = ("s64", "s65", "s70")[kk // 6]
                A(f"buffer_load_dwordx4 v[{48+4*kk}:{51+4*kk}], v41, s[56:59], {so} offen offset:{768*(kk%6)} sc1")
            A("s_waitcnt vmcnt(0)")
            A("v_max3_u32 v43, v48, v49, v50")
            for i in range(51, 111, 2):
                A(f"v_max3_u32 v43, v43, v{i}, v{i+1}")
            A("v_max_u32 v43, v43, v111")
            A("v_cmp_eq_u32 vcc, -1, v43")
            A(f"s_cbranch_vccz {label}_ok")
            A("s_sub_u32 s98, s98, 1")
            A(f"s_cbranch_scc0 {label}")
            A(f"{label}_ok:")
            for lvl in (32, 16, 8, 4):
                for i in range(lvl):
                    A(f"v_add_f32 v{48+i}, v{48+i}, v{48+lvl+i}")
            for k in range(4):
                A(f"v_mov_b32 v{44+k}, v{48+k}")
            self.nop(1)
            for k in range(4):
                A(f"v_permlane32_swap_b32 v{44+k}, v{48+k}")
            self.nop(1)
            for k in range(4):
                A(f"v_add_f32 v{44+k}, v{44+k}, v{48+k}")

        A("s_cmp_eq_u32 s63, 0")
        A("s_cbranch_scc1 L_noG")
        A("buffer_load_dwordx2 v[112:113], v42, s[28:31], 0 offen")
        poll32("L_pollG", WS_G)
        for k in range(4):
            self.bf16r(44 + k, 44 + k)
        for k in range(4):
            A(f"v_mul_f32 v{48+k}, {0xBFB8AA3B:#x}, v{44+k}")
        for k in range(4):
            A(f"v_exp_f32 v{48+k}, v{48+k}")
        for k in range(4):
            A(f"v_add_f32 v{48+k}, 1.0, v{48+k}")
        for k in range(4):
            A(f"v_rcp_f32 v{48+k}, v{48+k}")
        for k in range(4):
            A(f"v_mul_f32 v{116+k}, v{44+k}, v{48+k}")
        for k in range(4):
            self.bf16r(116 + k, 116 + k)
        A("v_lshlrev_b32 v120, 16, v112")
        A("v_and_b32 v121, 0xffff0000, v112")
        A("v_lshlrev_b32 v122, 16, v113")
        A("v_and_b32 v123, 0xffff0000, v113")
        A("L_noG:")
        self.stamp(6)
        A("s_mul_i32 s64, s61, 5120")
        A(f"s_add_u32 s64, s64, {WS_OP:#x}")
        A("v_mul_u32_u24 v6, 640, v10")
        A("v_lshl_add_u32 v6, v11, 4, v6")
        A("v_add_u32 v6, s64, v6")
        A("v_and_b32 v7, 7, v0")
        A("v_xor_b32 v7, v7, v10")
        A("v_mul_u32_u24 v7, 640, v7")
        A("v_add_u32 v7, s64, v7")
        A("v_lshlrev_b32 v8, 4, v11")
        A("v_lshlrev_b32 v40, 3, v11")
        A("v_lshl_add_u32 v40, v10, 8, v40")
        A(f"s_mov_b32 s71, {LOG2E:#x}")
        A("s_mov_b32 s64, 0")
        A("s_mov_b32 s65, 1")
        A("v_mov_b32 v1, 0")
        A("s_setprio 0")
        A("L_waitS:")
        A(f"ds_read_b32 v12, v1 offset:{L_CNT}")
        A("s_waitcnt lgkmcnt(0)")
        A("v_readfirstlane_b32 s70, v12")
        A("s_cmp_ge_u32 s70, 4")
        A("s_cbranch_scc1 L_gotS")
        A("s_sleep 1")
        A("s_sub_u32 s99, s99, 1")
        A("s_cbranch_scc0 L_waitS")
        A("L_gotS:")
        A("s_setprio 3")
        self.stamp(7)
        A(f"ds_read_b128 v[12:15], v1 offset:{L_ML}")
        A(f"ds_read_b128 v[16:19], v1 offset:{L_ML+16}")
        for w in range(4):
            A(f"ds_read_b128 v[{20+4*w}:{23+4*w}], v8 offset:{L_OP+512*w}")
        A("s_waitcnt lgkmcnt(4)")
        A("v_max3_f32 v36, v12, v14, v16")
        A("v_max_f32 v36, v36, v18")
        for w in range(4):
            A(f"v_sub_f32 v{12+2*w}, v{12+2*w}, v36")
        for w in range(4):
            A(f"v_mul_f32 v{12+2*w}, s71, v{12+2*w}")
        for w in range(4):
            A(f"v_exp_f32 v{12+2*w}, v{12+2*w}")
        self.nop(1)
        A("v_mul_f32 v37, v12, v13")
        for w in range(1, 4):
            A(f"v_fmac_f32 v37, v{12+2*w}, v{13+2*w}")
        A("s_waitcnt lgkmcnt(0)")
        for k in range(4):
            A(f"v_mul_f32 v{20+k}, v12, v{20+k}")
        for w in range(1, 4):
            for k in range(4):
                A(f"v_fmac_f32 v{20+k}, v{12+2*w}, v{20+4*w+k}")
        A("v_cndmask_b32 v20, v20, v36, s[64:65]")
        A("v_cndmask_b32 v21, v21, v37, s[64:65]")
        for k in range(4):
            A(f"v_min_u32 v{20+k}, -2, v{20+k}")
        self.setexec(0xffffffff, 1)
        A("buffer_store_dwordx4 v[20:23], v4, s[56:59], 0 offen sc1")
        A("s_mov_b64 exec, -1")
        self.stamp(8)
        A("L_pollO:")
        A("buffer_load_dwordx2 v[28:29], v7, s[56:59], 0 offen offset:512 sc1")
        for kk in range(4):
            A(f"buffer_load_dwordx4 v[{48+4*kk}:{51+4*kk}], v6, s[56:59], 0 offen offset:{1280*kk} sc1")
        A("s_waitcnt vmcnt(0)")
        A("v_max3_u32 v43, v28, v29, v48")
        for i in range(49, 63, 2):
            A(f"v_max3_u32 v43, v43, v{i}, v{i+1}")
        A("v_max_u32 v43, v43, v63")
        A("v_cmp_eq_u32 vcc, -1, v43")
        A("s_cbranch_vccz L_pollO_ok")
        A("s_sub_u32 s98, s98, 1")
        A("s_cbranch_scc0 L_pollO")
        A("L_pollO_ok:")
        self.stamp(9)
        A("v_max_f32_dpp v30, v28, v28 quad_perm:[1,0,3,2] row_mask:0xf bank_mask:0xf")
        self.nop(2)
        A("v_max_f32_dpp v30, v30, v30 quad_perm:[2,3,0,1] row_mask:0xf bank_mask:0xf")
        A("v_sub_f32 v30, v28, v30")
        A("v_mul_f32 v30, s71, v30")
        A("v_exp_f32 v30, v30")
        self.nop(1)
        A("v_mul_f32 v31, v30, v29")
        self.nop(2)
        A("v_add_f32_dpp v31, v31, v31 quad_perm:[1,0,3,2] row_mask:0xf bank_mask:0xf")
        self.nop(2)
        A("v_add_f32_dpp v31, v31, v31 quad_perm:[2,3,0,1] row_mask:0xf bank_mask:0xf")
        A("v_rcp_f32 v31, v31")
        self.nop(1)
        A("v_mul_f32 v30, v30, v31")
        self.nop(2)
        for b in range(2):
            for k in range(4):
                A(f"v_mul_f32_dpp v{12+4*b+k}, v30, v{48+8*b+k} row_newbcast:{4*b} row_mask:0xf bank_mask:0xf")
            for k in range(4):
                A(f"v_fmac_f32_dpp v{12+4*b+k}, v30, v{52+8*b+k} row_newbcast:{4*b+2} row_mask:0xf bank_mask:0xf")
        self.nop(1)
        for k in range(4):
            A(f"v_permlane32_swap_b32 v{12+k}, v{16+k}")
        self.nop(1)
        for k in range(4):
            A(f"v_add_f32 v{12+k}, v{12+k}, v{16+k}")
        A("v_cvt_pk_bf16_f32 v12, v12, v13")
        A("v_cvt_pk_bf16_f32 v13, v14, v15")
        A(f"ds_write_b64 v40, v[12:13] offset:{L_HB}")
        A("s_waitcnt lgkmcnt(0)")
        for s in range(4):
            A(f"ds_read_b128 v[{12+4*s}:{15+4*s}], v9 offset:{L_HB+64*s}")
        for s in range(4):
            A(f"s_waitcnt lgkmcnt({3-s})")
            for t in range(5):
                d = 48 + 4 * t
                w = WOR + (t * 4 + s) * 4
                c = "0" if s == 0 else f"v[{d}:{d+3}]"
                A(f"v_mfma_f32_16x16x32_bf16 v[{d}:{d+3}], v[{w}:{w+3}], v[{12+4*s}:{15+4*s}], {c}")
        self.nop(4)
        A("s_mov_b64 exec, s[66:67]")
        for t in range(5):
            for k in range(4):
                A(f"v_min_u32 v{48+4*t+k}, -2, v{48+4*t+k}")
            A(f"buffer_store_dwordx4 v[{48+4*t}:{51+4*t}], v5, s[56:59], s69 offen offset:{64*t} sc1")
        A("s_mov_b64 exec, -1")
        self.stamp(10)
        A("s_cmp_eq_u32 s63, 0")
        A("s_cbranch_scc1 L_auxdone")
        poll32("L_pollY", WS_Y)
        self.stamp(11)
        for k in range(4):
            self.bf16r(44 + k, 44 + k)
        for k in range(4):
            A(f"v_mul_f32 v{44+k}, v{44+k}, v{116+k}")
        for k in range(4):
            self.bf16r(44 + k, 44 + k)
        for k in range(4):
            A(f"v_add_f32 v{44+k}, v{44+k}, v{120+k}")
        A("v_cvt_pk_bf16_f32 v44, v44, v45")
        A("v_cvt_pk_bf16_f32 v45, v46, v47")
        self.setexec(0xfffff, 0)
        A("buffer_store_dwordx2 v[44:45], v42, s[48:51], 0 offen")
        A("L_auxdone:")
        if self.stamps:
            A("s_waitcnt vmcnt(0)")
        self.stamp(12)
        self.dump_stamps(13)

    def text(self):
        self.build()
        out = [HEADER.rstrip("\n")]
        out.append(f"; @launch grid=(256,1,1) block=(320,1,1) lds={L_END}")
        out.append('.amdgcn_target "amdgcn-amd-amdhsa--gfx950"')
        out += [".text", f".globl {KNAME}", ".p2align 8", f".type {KNAME},@function", f"{KNAME}:"]
        out += self.L
        out += ['.section .rodata,"a"', ".p2align 6", f".amdhsa_kernel {KNAME}",
                "  .amdhsa_next_free_vgpr 256", "  .amdhsa_next_free_sgpr 102", "  .amdhsa_accum_offset 256",
                "  .amdhsa_group_segment_fixed_size 0", "  .amdhsa_kernarg_size 96", "  .amdhsa_user_sgpr_count 2",
                "  .amdhsa_user_sgpr_kernarg_segment_ptr 1", "  .amdhsa_system_sgpr_workgroup_id_x 1",
                "  .amdhsa_float_denorm_mode_32 3",
                ".end_amdhsa_kernel"]
        return "\n".join(out) + "\n"


if __name__ == "__main__":
    import argparse, ast
    ap = argparse.ArgumentParser()
    ap.add_argument("out")
    ap.add_argument("opts", nargs="*")
    a = ap.parse_args()
    kw = {}
    for o in a.opts:
        k, v = o.split("=", 1)
        try:
            v = ast.literal_eval(v)
        except Exception:
            pass
        kw[k] = v
    t = Gen(**kw).text()
    open(a.out, "w").write(t)
    sys.path.insert(0, "gen")
    import lint
    r = lint.lint(t)
    print("\n".join(r) if r else "lint clean")
```

```python
import sys
KNAME = "recurrent_scan__mha_block_cached__glu_gated_bilinear__decode_kernel"
HEADER = open("recurrent_scan__mha_block_cached__glu_gated_bilinear__decode.s.ref").read().split("; Override launch")[0]

WS_PA = 0x00000
WS_OP = 0x40000
WS_G = 0x70000
WS_Y = 0xA0000
WS_ST = 0x100000
WS_SIZE = 0x200000
L_QP = 0x0000
L_OP = 0x0800
L_ML = 0x1000
L_CNT = 0x1040
L_HB = 0x1100
L_SC = 0x1400
L_WO = 0x5400
L_WD = L_WO + 21504
L_END = L_WD + 11264
LOG2E = 0x3FB8AA3B
SCALE = 0x3DB504F3
INV640 = 0x3ACCCCCD
EPS = 0x3727C5AC


class Gen:
    def __init__(self, stamps=False, pattern="g4b4", wq_flags="", aux_early=False, kvflags="nt", vflags=None, mix=(5, 2), dbgst=False):
        self.L = []
        self.stamps = stamps or dbgst
        self.dbgst = dbgst
        self.pattern = pattern
        self.wq_flags = wq_flags
        self.aux_early = aux_early
        self.kvflags = kvflags
        self.vflags = kvflags if vflags is None else vflags
        self.mix = mix
        self.nst = 0

    def A(self, s):
        self.L.append("    " + s if not s.endswith(":") else s)

    def nop(self, n):
        while n > 0:
            k = min(n, 16)
            self.A(f"s_nop {k-1}")
            n -= k

    def stamp(self, idx):
        if self.stamps:
            self.A(f"s_memrealtime s[{72+2*idx}:{73+2*idx}]")

    def setexec(self, lo, hi):
        self.A(f"s_mov_b32 exec_lo, {lo:#x}")
        self.A(f"s_mov_b32 exec_hi, {hi:#x}")

    def srd(self, d, p, size):
        self.A(f"s_mov_b32 s{d}, s{p}")
        self.A(f"s_and_b32 s{d+1}, s{p+1}, 0xffff")
        self.A(f"s_mov_b32 s{d+2}, {size:#x}")
        self.A(f"s_mov_b32 s{d+3}, 0x20000")

    def wave_reduce(self, op, r, t):
        A = self.A
        for sh in (8, 4, 2, 1):
            self.nop(2)
            A(f"{op}_dpp v{r}, v{r}, v{r} row_ror:{sh} row_mask:0xf bank_mask:0xf")
        for sw in ("v_permlane16_swap_b32", "v_permlane32_swap_b32"):
            A(f"v_mov_b32 v{t}, v{r}")
            self.nop(2)
            A(f"{sw} v{r}, v{t}")
            self.nop(1)
            A(f"{op} v{r}, v{r}, v{t}")

    def bf16r(self, d, s):
        self.A(f"v_cvt_pk_bf16_f32 v{d}, v{s}, v{s}")
        self.A(f"v_and_b32 v{d}, 0xffff0000, v{d}")

    def unpack10(self, raw, out):
        for e in range(10):
            if e % 2 == 0:
                self.A(f"v_lshlrev_b32 v{out+e}, 16, v{raw+e//2}")
            else:
                self.A(f"v_and_b32 v{out+e}, 0xffff0000, v{raw+e//2}")

    def ln_stats(self, x, mb, rs, t0, t1):
        A = self.A
        A(f"v_add_f32 v{mb}, v{x}, v{x+1}")
        for e in range(2, 10):
            A(f"v_add_f32 v{mb}, v{mb}, v{x+e}")
        self.wave_reduce("v_add_f32", mb, t0)
        A(f"v_mul_f32 v{mb}, {INV640:#x}, v{mb}")
        A(f"v_sub_f32 v{t0}, v{x}, v{mb}")
        A(f"v_mul_f32 v{rs}, v{t0}, v{t0}")
        for e in range(1, 10):
            A(f"v_sub_f32 v{t0}, v{x+e}, v{mb}")
            A(f"v_fmac_f32 v{rs}, v{t0}, v{t0}")
        self.wave_reduce("v_add_f32", rs, t0)
        A(f"v_mul_f32 v{rs}, {INV640:#x}, v{rs}")
        self.bf16r(mb, mb)
        self.bf16r(rs, rs)
        A(f"v_add_f32 v{rs}, {EPS:#x}, v{rs}")
        self.bf16r(rs, rs)
        A(f"v_sqrt_f32 v{rs}, v{rs}")
        self.nop(1)
        self.bf16r(rs, rs)
        A(f"v_rcp_f32 v{rs}, v{rs}")
        self.nop(1)

    def ln_apply(self, x, mb, rs):
        A = self.A
        for e in range(10):
            A(f"v_sub_f32 v{x+e}, v{x+e}, v{mb}")
        for e in range(10):
            self.bf16r(x + e, x + e)
        for e in range(10):
            A(f"v_mul_f32 v{x+e}, v{x+e}, v{rs}")
        for e in range(10):
            A(f"v_cvt_pk_bf16_f32 v{x+e}, v{x+e}, v{x+e}")

    def dump_stamps(self, nst):
        if not self.stamps:
            return
        A = self.A
        A("s_waitcnt lgkmcnt(0)")
        if self.dbgst:
            self.srd(52, 24, 256)
            A("s_mov_b64 exec, 1")
            lab = f"L_dbg{nst}"
            if nst == 8:
                A("s_cmp_lg_u32 s60, 1")
                A(f"s_cbranch_scc1 {lab}")
                A("s_cmp_ge_u32 s2, 8")
                A(f"s_cbranch_scc1 {lab}")
                A("s_lshl_b32 s64, s2, 2")
                A("v_mov_b32 v2, s64")
                A(f"v_mov_b32 v1, s{72+14}")
                A("buffer_store_dword v1, v2, s[52:55], 0 offen offset:8")
                A(f"v_mov_b32 v3, s{72+8}")
                A("buffer_atomic_umax v3, off, s[52:55], 0 offset:48 sc1")
                A("s_not_b32 s64, s72")
                A("v_mov_b32 v4, s64")
                A("buffer_atomic_umax v4, off, s[52:55], 0 offset:4 sc1")
            else:
                A(f"v_mov_b32 v1, s{72+14}")
                A("buffer_atomic_umax v1, off, s[52:55], 0 offset:44 sc1")
                A("s_cmp_eq_u32 s63, 0")
                A(f"s_cbranch_scc1 {lab}")
                A(f"v_mov_b32 v2, s{72+24}")
                A("buffer_atomic_umax v2, off, s[52:55], 0 offset:40 sc1")
            A(f"{lab}:")
            return
        self.srd(56, 26, WS_SIZE)
        A("s_mul_i32 s64, s2, 5")
        A("s_add_u32 s64, s64, s60")
        A("s_lshl_b32 s64, s64, 6")
        A(f"s_add_u32 s64, s64, {WS_ST:#x}")
        A("s_mov_b64 exec, 1")
        A("v_mov_b32 v1, s64")
        for i in range(nst):
            A(f"v_mov_b32 v{4+i}, s{72+2*i}")
        for i in range(nst, 15):
            A(f"v_mov_b32 v{4+i}, 0")
        A("s_getreg_b32 s65, hwreg(HW_REG_XCC_ID)")
        A("v_mov_b32 v19, s65")
        for q in range(4):
            A(f"buffer_store_dwordx4 v[{4+4*q}:{7+4*q}], v1, s[56:59], 0 offen offset:{16*q}")

    def build(self):
        A = self.A
        NB = 8
        A(f"s_cmp_ge_u32 s2, 256")
        A("s_cbranch_scc1 L_end")
        self.stamp(0)
        A("s_load_dwordx16 s[4:19], s[0:1], 0")
        A("s_load_dwordx8 s[20:27], s[0:1], 64")
        A("v_lshrrev_b32 v1, 6, v0")
        A("v_and_b32 v0, 63, v0")
        A("v_readfirstlane_b32 s60, v1")
        A("s_and_b32 s61, s2, 7")
        A("s_lshl_b32 s61, s61, 2")
        A("s_bfe_u32 s64, s2, 0x20003")
        A("s_add_u32 s61, s61, s64")
        A("s_lshr_b32 s62, s2, 5")
        A("s_lshr_b32 s63, s2, 7")
        A("s_cmp_eq_u32 s60, 0")
        A("s_cbranch_scc1 L_aux")
        self.stream(NB)
        A("L_aux:")
        self.aux()
        A("L_end:")
        A("s_endpgm")

    def stream(self, NB):
        A = self.A
        SA, SB = 128, 192
        XD = 20
        A("s_sub_u32 s64, s60, 1")
        A("v_lshrrev_b32 v30, 4, v0")
        A("v_and_b32 v31, 15, v0")
        A("s_lshl_b32 s65, s64, 2")
        A("v_add_u32 v3, s65, v31")
        A("v_and_b32 v3, 15, v3")
        A("v_mul_u32_u24 v3, 20, v3")
        A("v_mul_u32_u24 v2, 320, v30")
        A("s_mul_i32 s66, s63, 1280")
        A("v_add3_u32 v3, v3, v2, s66")
        A("s_mul_i32 s65, s64, %d" % (40 * 8192))
        A("s_lshl_b32 s66, s61, 8")
        A("s_add_u32 s65, s65, s66")
        A("s_mov_b32 s66, %d" % (160 * 8192))
        A("v_mul_lo_u32 v2, v30, s66")
        A("v_lshl_add_u32 v2, v31, 4, v2")
        A("v_add_u32 v2, s65, v2")
        A("s_lshl_b32 s65, s63, 5")
        A("s_add_u32 s65, s65, s61")
        A("s_lshl_b32 s65, s65, 21")
        A("s_and_b32 s66, s62, 3")
        A("s_lshl_b32 s66, s66, 2")
        A("s_add_u32 s66, s66, s64")
        if self.pattern == "g4b4":
            A("s_lshl_b32 s66, s66, 12")
            SUBSTEP = 65536
        elif self.pattern == "contig":
            A("s_lshl_b32 s66, s66, 17")
            SUBSTEP = 4096
        else:
            raise ValueError
        A("s_add_u32 s65, s65, s66")
        A("v_lshlrev_b32 v1, 4, v0")
        A("v_add_u32 v1, s65, v1")
        A("s_waitcnt lgkmcnt(0)")
        self.srd(28, 4, 2560)
        A("buffer_load_dwordx4 v[8:11], v3, s[28:31], 0 offen")
        A("buffer_load_dword v12, v3, s[28:31], 0 offen offset:16")
        self.srd(36, 10, 640 * 4096 * 2)
        self.srd(32, 6, 0x8000000)
        A("s_mov_b32 s67, 0")
        A("s_mov_b32 s68, 0")

        def wqreg(n):
            return 32 + 4 * n if n < 24 else SB + 4 * (n - 24)

        issued = ["x0", "x1"]

        def kload(slot, r, fl=None):
            reg = slot + 4 * r
            fl = self.kvflags if fl is None else fl
            A(f"buffer_load_dwordx4 v[{reg}:{reg+3}], v1, s[32:35], s68 offen offset:{(r&3)*1024} {fl}")
            if r & 3 == 3:
                A(f"s_add_u32 s68, s68, {SUBSTEP}")

        a, b_ = self.mix
        n = 0
        r = 0
        while n < 40 or r < 16:
            for _ in range(a):
                if n < 40:
                    reg = wqreg(n)
                    A(f"buffer_load_dwordx4 v[{reg}:{reg+3}], v2, s[36:39], s67 offen {self.wq_flags}")
                    A("s_add_u32 s67, s67, 8192")
                    issued.append(f"w{n}")
                    n += 1
            for _ in range(b_):
                if r < 16:
                    kload(SA, r)
                    issued.append(f"a{r}")
                    r += 1
        self.stamp(1)
        A("v_and_b32 v16, 1, v31")
        A("v_lshlrev_b32 v16, 4, v16")
        A("v_mov_b32 v17, 0xffff")
        A("v_lshlrev_b32 v16, v16, v17")
        A("v_lshrrev_b32 v17, 1, v31")
        for k in range(4):
            A(f"v_cmp_eq_u32 vcc, {k}, v17")
            self.nop(2)
            A(f"v_cndmask_b32 v{4+k}, 0, v16, vcc")
        A("s_mov_b32 s40, 0xcccccccc")
        A("s_mov_b32 s41, 0xcccccccc")
        A("s_mov_b32 s42, 0xaaaaaaaa")
        A("s_mov_b32 s43, 0xaaaaaaaa")

        def wait_for(tag):
            A(f"s_waitcnt vmcnt({len(issued)-1-issued.index(tag)})")

        wait_for("x1")
        self.stamp(2)
        self.unpack10(8, XD)
        self.ln_stats(XD, 13, 14, 15, 16)
        self.ln_apply(XD, 13, 14)
        self.nop(2)

        def mkA(aset, src, lane):
            for k in range(4):
                A(f"v_and_b32_dpp v{aset+k}, v{src}, v{4+k} row_newbcast:{lane} row_mask:0xf bank_mask:0xf")

        mkA(8, XD + 0, 0)
        for n in range(40):
            cur = 8 + 4 * (n & 1)
            if n + 1 < 40:
                mkA(8 + 4 * ((n + 1) & 1), XD + (n + 1) % 10, (n + 1) // 10)
            else:
                self.nop(2)
            wait_for(f"w{n}")
            reg = wqreg(n)
            c = "0" if n == 0 else "v[16:19]"
            A(f"v_mfma_f32_16x16x32_bf16 v[16:19], v[{cur}:{cur+3}], v[{reg}:{reg+3}], {c}")
            if n >= 24:
                kload(SB, n - 24)
                issued.append(f"b{n-24}")
        self.stamp(3)
        A("v_lshlrev_b32 v3, 5, v31")
        A("v_lshl_add_u32 v3, v30, 4, v3")
        A("s_lshl_b32 s65, s64, 9")
        A("v_add_u32 v3, s65, v3")
        self.nop(5)
        self.setexec(0xffffffff, 0)
        A(f"ds_write_b128 v3, v[16:19] offset:{L_QP}")
        A("s_mov_b64 exec, -1")
        A("s_waitcnt lgkmcnt(0)")
        A("s_barrier")
        A("v_lshlrev_b32 v2, 5, v31")
        for w in range(4):
            A(f"ds_read_b128 v[{32+8*w}:{35+8*w}], v2 offset:{L_QP+512*w}")
            A(f"ds_read_b128 v[{36+8*w}:{39+8*w}], v2 offset:{L_QP+512*w+16}")
        A("s_lshl_b32 s65, s64, 12")
        A("v_lshlrev_b32 v29, 2, v0")
        A("v_add_u32 v29, s65, v29")
        A("v_mov_b32 v24, 0xff800000")
        A("v_mov_b32 v25, 0")
        A("s_waitcnt lgkmcnt(0)")
        for e in range(8):
            A(f"v_add_f32 v{32+e}, v{32+e}, v{40+e}")
            A(f"v_add_f32 v{48+e}, v{48+e}, v{56+e}")
        for e in range(8):
            A(f"v_add_f32 v{32+e}, v{32+e}, v{48+e}")
        for k in range(4):
            A(f"v_cvt_pk_bf16_f32 v{20+k}, v{32+2*k}, v{33+2*k}")
        self.stamp(4)
        A("s_mov_b32 s69, 2")
        A("v_mov_b32 v28, v29")
        P = 32

        def switch_stream():
            lab = f"L_sw{self.nst}"
            self.nst += 1
            A(f"s_cmp_lg_u32 s69, {NB}")
            A(f"s_cbranch_scc1 {lab}")
            A("s_mov_b32 s32, s8")
            A("s_and_b32 s33, s9, 0xffff")
            A("s_mov_b32 s68, 0")
            A(f"{lab}:")
            A("s_add_u32 s69, s69, 1")

        def kblock(slot):
            switch_stream()
            for r in range(16):
                reg = slot + 4 * r
                A("s_waitcnt vmcnt(31)")
                A(f"v_dot2_f32_bf16 v{P+r}, v{reg}, v20, 0")
                for k in range(1, 4):
                    A(f"v_dot2_f32_bf16 v{P+r}, v{reg+k}, v{20+k}, v{P+r}")
                kload(slot, r)
            for r in range(8):
                A(f"v_add_f32_dpp v{P+r}, v{P+r}, v{P+r} row_ror:8 row_mask:0xf bank_mask:0x3")
                A(f"v_add_f32_dpp v{P+r}, v{P+r+8}, v{P+r+8} row_ror:8 row_mask:0xf bank_mask:0xc")
            for r in range(4):
                A(f"v_add_f32_dpp v{P+r}, v{P+r}, v{P+r} row_shl:4 row_mask:0xf bank_mask:0x5")
                A(f"v_add_f32_dpp v{P+r}, v{P+r+4}, v{P+r+4} row_shr:4 row_mask:0xf bank_mask:0xa")
            self.nop(1)
            for r in range(4):
                A(f"v_add_f32_dpp v{P+r}, v{P+r}, v{P+r} quad_perm:[2,3,0,1] row_mask:0xf bank_mask:0xf")
            A(f"v_cndmask_b32 v{P}, v{P}, v{P+2}, s[40:41]")
            A(f"v_cndmask_b32 v{P+1}, v{P+1}, v{P+3}, s[40:41]")
            self.nop(1)
            A(f"v_add_f32_dpp v{P}, v{P}, v{P} quad_perm:[1,0,3,2] row_mask:0xf bank_mask:0xf")
            A(f"v_add_f32_dpp v{P+1}, v{P+1}, v{P+1} quad_perm:[1,0,3,2] row_mask:0xf bank_mask:0xf")
            A(f"v_cndmask_b32 v{P}, v{P}, v{P+1}, s[42:43]")
            self.bf16r(P, P)
            A(f"v_mul_f32 v{P}, {SCALE:#x}, v{P}")
            self.bf16r(P, P)
            A(f"v_max_f32 v24, v24, v{P}")
            A(f"ds_write_b32 v28, v{P} offset:{L_SC}")
            A("v_add_u32 v28, 256, v28")

        A(f"s_mov_b32 s70, {NB//2}")
        A("L_kloop:")
        kblock(SA)
        kblock(SB)
        A("s_sub_u32 s70, s70, 1")
        A("s_cmp_lg_u32 s70, 0")
        A("s_cbranch_scc1 L_kloop")
        self.stamp(5)
        A("s_waitcnt lgkmcnt(0)")
        A(f"ds_read_b32 v27, v29 offset:{L_SC}")
        self.wave_reduce("v_max_f32", 24, 30)
        A(f"v_mul_f32 v28, {LOG2E:#x}, v24")
        A("v_sub_f32 v28, 0, v28")
        A(f"s_mov_b32 s71, {LOG2E:#x}")
        for k in range(4):
            A(f"v_mov_b32 v{16+k}, 0")

        def mkP():
            A("s_waitcnt lgkmcnt(0)")
            A("v_fma_f32 v30, v27, s71, v28")
            A("v_add_u32 v29, 256, v29")
            A("v_exp_f32 v30, v30")
            A(f"ds_read_b32 v27, v29 offset:{L_SC}")
            A("v_add_f32 v25, v25, v30")
            A("v_cvt_pk_bf16_f32 v26, v30, v30")

        def vblock(slot):
            lab = f"L_sw{self.nst}"
            self.nst += 1
            A(f"s_cmp_lg_u32 s69, {2*NB}")
            A(f"s_cbranch_scc1 {lab}")
            A("s_mov_b32 s34, 0")
            A(f"{lab}:")
            A("s_add_u32 s69, s69, 1")
            mkP()
            self.nop(2)
            mkA(8, 26, 0)
            for r in range(16):
                cur = 8 + 4 * (r & 1)
                if r + 1 < 16:
                    mkA(8 + 4 * ((r + 1) & 1), 26, r + 1)
                else:
                    self.nop(1)
                reg = slot + 4 * r
                A("s_waitcnt vmcnt(31)")
                A(f"v_mfma_f32_16x16x32_bf16 v[16:19], v[{cur}:{cur+3}], v[{reg}:{reg+3}], v[16:19]")
                kload(slot, r, self.vflags)

        A(f"s_mov_b32 s70, {NB//2}")
        A("L_vloop:")
        vblock(SA)
        vblock(SB)
        A("s_sub_u32 s70, s70, 1")
        A("s_cmp_lg_u32 s70, 0")
        A("s_cbranch_scc1 L_vloop")
        self.stamp(6)
        self.wave_reduce("v_add_f32", 25, 30)
        self.setexec(0xffffffff, 0)
        A(f"ds_write_b128 v3, v[16:19] offset:{L_OP}")
        A("s_mov_b64 exec, 1")
        A("s_lshl_b32 s65, s64, 3")
        A("v_mov_b32 v2, s65")
        A(f"ds_write_b64 v2, v[24:25] offset:{L_ML}")
        A("v_mov_b32 v2, 0")
        A("v_mov_b32 v30, 1")
        A("s_waitcnt lgkmcnt(0)")
        A(f"ds_add_u32 v2, v30 offset:{L_CNT}")
        self.stamp(7)
        self.dump_stamps(8)
        A("s_endpgm")

    def aux(self):
        A = self.A
        A("s_setprio 3")
        A("s_mov_b32 s98, 0x40000")
        A("s_mov_b32 s99, 0x400000")
        A("v_mov_b32 v1, 0")
        A(f"ds_write_b32 v1, v1 offset:{L_CNT}")
        A("v_lshrrev_b32 v2, 4, v0")
        A("v_and_b32 v3, 15, v0")
        A("s_waitcnt lgkmcnt(0)")
        if not self.aux_early:
            A("s_barrier")
        self.srd(28, 4, 2560)
        self.srd(32, 16, 640 * 1728 * 2)
        self.srd(36, 18, 640 * 1728 * 2)
        self.srd(40, 12, 4096 * 640 * 2)
        self.srd(44, 20, 1728 * 640 * 2)
        self.srd(48, 22, 2560)
        self.srd(52, 24, 256)
        self.srd(56, 26, WS_SIZE)
        self.stamp(1)
        for k in range(4):
            A(f"v_mov_b32 v{8+k}, -1")
        A("s_lshl_b32 s64, s61, 3")
        A("s_add_u32 s64, s64, s62")
        A("s_mul_i32 s64, s64, 640")
        A(f"s_add_u32 s64, s64, {WS_OP:#x}")
        A("v_lshlrev_b32 v4, 4, v0")
        A("v_add_u32 v4, s64, v4")
        self.setexec(0xffffffff, 1)
        A("buffer_store_dwordx4 v[8:11], v4, s[56:59], 0 offen sc1")
        A("s_mov_b64 exec, -1")
        A("s_lshl_b32 s64, s62, 6")
        A("s_add_u32 s64, s64, s61")
        A("s_mul_i32 s64, s64, 384")
        A("v_and_b32 v5, 1, v0")
        A("v_mul_u32_u24 v5, 12288, v5")
        A("v_lshl_add_u32 v5, v2, 4, v5")
        A("v_add_u32 v5, s64, v5")
        A("s_mov_b32 s66, 0x00030003")
        A("s_mov_b32 s67, 0x00030003")
        A(f"s_mov_b32 s68, {WS_G:#x}")
        A(f"s_mov_b32 s69, {WS_Y:#x}")
        A("s_mov_b64 exec, s[66:67]")
        for t in range(5):
            A(f"buffer_store_dwordx4 v[8:11], v5, s[56:59], s68 offen offset:{64*t} sc1")
            A(f"buffer_store_dwordx4 v[8:11], v5, s[56:59], s69 offen offset:{64*t} sc1")
        A("s_mov_b64 exec, -1")
        A("s_cmp_ge_u32 s2, 216")
        A("s_cbranch_scc1 L_noA")
        A("s_mul_i32 s64, s2, 2428")
        A("s_lshr_b32 s64, s64, 16")
        A("s_mul_i32 s65, s64, 27")
        A("s_sub_u32 s65, s2, s65")
        A("v_mul_u32_u24 v6, 20, v0")
        A("buffer_load_dwordx4 v[12:15], v6, s[28:31], 0 offen")
        A("buffer_load_dword v16, v6, s[28:31], 0 offen offset:16")
        A("buffer_load_dwordx4 v[20:23], v6, s[28:31], 0 offen offset:1280")
        A("buffer_load_dword v24, v6, s[28:31], 0 offen offset:1296")
        A("v_lshrrev_b32 v7, 3, v0")
        A("v_mul_u32_u24 v6, 20, v7")
        A("s_mul_i32 s70, s64, 160")
        A("v_add_u32 v6, s70, v6")
        A("buffer_load_dwordx4 v[28:31], v6, s[28:31], 0 offen")
        A("buffer_load_dword v32, v6, s[28:31], 0 offen offset:16")
        A("buffer_load_dwordx4 v[36:39], v6, s[28:31], 0 offen offset:1280")
        A("buffer_load_dword v40, v6, s[28:31], 0 offen offset:1296")
        A("v_mul_u32_u24 v6, 34560, v7")
        A("v_and_b32 v7, 7, v0")
        A("v_lshl_add_u32 v6, v7, 4, v6")
        A("s_mul_i32 s70, s64, %d" % (80 * 3456))
        A("s_lshl_b32 s71, s65, 7")
        A("s_add_u32 s70, s70, s71")
        A("v_add_u32 v6, s70, v6")
        A("s_mov_b32 s70, 0")
        WG0, WU0 = 128, 168
        for r in range(10):
            A(f"buffer_load_dwordx4 v[{WG0+4*r}:{WG0+4*r+3}], v6, s[32:35], s70 offen nt")
            A(f"buffer_load_dwordx4 v[{WU0+4*r}:{WU0+4*r+3}], v6, s[36:39], s70 offen nt")
            A("s_add_u32 s70, s70, 3456")
        if self.aux_early:
            A("s_barrier")
        A("v_and_b32 v44, 1, v3")
        A("v_lshlrev_b32 v44, 4, v44")
        A("v_mov_b32 v45, 0xffff")
        A("v_lshlrev_b32 v44, v44, v45")
        A("v_bfe_u32 v45, v3, 1, 2")
        for k in range(4):
            A(f"v_cmp_eq_u32 vcc, {k}, v45")
            self.nop(2)
            A(f"v_cndmask_b32 v{48+k}, 0, v44, vcc")
        A("s_waitcnt vmcnt(20)")
        X0, X1 = 60, 70
        for (raw, rawA, X) in ((12, 28, X0), (20, 36, X1)):
            self.unpack10(raw, 80)
            self.ln_stats(80, 52, 53, 54, 55)
            self.unpack10(rawA, X)
            self.ln_apply(X, 52, 53)
        D = {(0, 0): 96, (0, 1): 100, (1, 0): 104, (1, 1): 108}
        for r in range(10):
            for b, X in ((0, X0), (1, X1)):
                for k in range(4):
                    A(f"v_and_b32 v{112+4*b+k}, v{X+r}, v{48+k}")
            A(f"s_waitcnt vmcnt({18-2*r})")
            self.nop(1)
            for b in range(2):
                for mat, W in ((0, WG0), (1, WU0)):
                    d = D[(b, mat)]
                    c = "0" if r == 0 else f"v[{d}:{d+3}]"
                    A(f"v_mfma_f32_16x16x32_bf16 v[{d}:{d+3}], v[{112+4*b}:{115+4*b}], v[{W+4*r}:{W+4*r+3}], {c}")
        A("v_add_u32 v6, 40, v0")
        A("v_and_b32 v6, 63, v6")
        A("v_lshlrev_b32 v6, 2, v6")
        self.nop(8)
        for i in range(16):
            A(f"ds_bpermute_b32 v{112+i}, v6, v{96+i}")
        A("s_mul_i32 s70, s64, %d" % (4 * 6912))
        A("s_lshl_b32 s71, s65, 8")
        A("s_add_u32 s70, s70, s71")
        A("v_lshlrev_b32 v6, 5, v3")
        A("v_lshl_add_u32 v6, v2, 4, v6")
        A("v_add_u32 v6, s70, v6")
        A("s_waitcnt lgkmcnt(0)")
        for i in range(16):
            A(f"v_add_f32 v{96+i}, v{96+i}, v{112+i}")
        self.setexec(0x00ff00ff, 0)
        for b in range(2):
            for mat in range(2):
                d = D[(b, mat)]
                A(f"s_mov_b32 s70, {WS_PA + (b*2+mat)*6912}")
                A(f"buffer_store_dwordx4 v[{d}:{d+3}], v6, s[56:59], s70 offen sc1")
        A("s_mov_b64 exec, -1")
        if self.aux_early:
            A("s_branch L_doneA")
        A("L_noA:")
        if self.aux_early:
            A("s_barrier")
            A("L_doneA:")
        A("s_waitcnt vmcnt(0)")
        A("s_mov_b64 exec, 1")
        A("v_mov_b32 v6, 1")
        A("buffer_atomic_add v6, off, s[52:55], 0 sc1")
        A("s_mov_b64 exec, -1")
        self.stamp(2)
        A("v_mul_u32_u24 v6, 205, v0")
        A("v_lshrrev_b32 v6, 11, v6")
        A("v_mul_u32_u24 v7, 10, v6")
        A("v_sub_u32 v7, v0, v7")
        A("v_mul_u32_u24 v6, 1280, v6")
        A("v_lshl_add_u32 v6, v7, 4, v6")
        A("s_mul_i32 s64, s62, 160")
        A("v_add_u32 v6, s64, v6")
        A("s_mul_i32 s64, s61, %d" % (54 * 1280))
        A("s_mov_b32 s65, s64")
        for i in range(11):
            A(f"s_mov_b32 m0, {L_WD + 960*i}")
            if i == 9:
                A("s_mov_b32 s65, s64")
            else:
                A("s_nop 0")
            A("buffer_load_dwordx4 v6, s[44:47], s65 offen nt lds")
            A("s_add_u32 s65, s65, 7680")
        A("s_mul_i32 s65, s61, %d" % (128 * 1280))
        for i in range(22):
            A(f"s_mov_b32 m0, {L_WO + 960*i}")
            A("s_nop 0")
            A("buffer_load_dwordx4 v6, s[40:43], s65 offen nt lds")
            A("s_add_u32 s65, s65, 7680")
        A("v_lshrrev_b32 v7, 2, v3")
        A("v_lshl_add_u32 v7, v2, 3, v7")
        A("v_mul_u32_u24 v7, 160, v7")
        A("v_and_b32 v8, 3, v3")
        A("v_lshl_add_u32 v7, v8, 3, v7")
        A("s_waitcnt vmcnt(0)")
        WOR = 128
        WDR = 208
        for t in range(5):
            for s in range(2):
                for u in range(2):
                    rg = WDR + (t * 2 + s) * 4 + 2 * u
                    A(f"ds_read_b64_tr_b16 v[{rg}:{rg+1}], v7 offset:{L_WD + (32*s+4*u)*160 + 32*t}")
            A("s_waitcnt lgkmcnt(0)")
        for t in range(5):
            for s in range(4):
                for u in range(2):
                    rg = WOR + (t * 4 + s) * 4 + 2 * u
                    A(f"ds_read_b64_tr_b16 v[{rg}:{rg+1}], v7 offset:{L_WO + (32*s+4*u)*160 + 32*t}")
            A("s_waitcnt lgkmcnt(0)")
        self.stamp(3)
        A("L_pollA:")
        A("buffer_load_dword v6, off, s[52:55], 0 sc1")
        A("s_waitcnt vmcnt(0)")
        A("v_readfirstlane_b32 s64, v6")
        A("s_cmp_ge_u32 s64, 256")
        A("s_cbranch_scc1 L_gotA")
        A("s_sleep 4")
        A("s_sub_u32 s98, s98, 1")
        A("s_cbranch_scc0 L_pollA")
        A("L_gotA:")
        self.stamp(4)
        A("v_min_u32 v6, 53, v0")
        A("s_mul_i32 s64, s61, 54")
        A("v_add_u32 v6, s64, v6")
        A("v_lshlrev_b32 v6, 2, v6")
        A(f"s_mov_b32 s64, {WS_PA}")
        for i in range(32):
            A(f"buffer_load_dword v{12+i}, v6, s[56:59], s64 offen sc1")
            A("s_add_u32 s64, s64, 6912")
        A("v_and_b32 v9, 1, v0")
        A("v_lshlrev_b32 v9, 8, v9")
        A("v_lshl_add_u32 v9, v2, 4, v9")
        A("v_lshlrev_b32 v8, 1, v0")
        A("v_cmp_gt_u32 vcc, 54, v0")
        A("s_waitcnt vmcnt(0)")
        for q in range(4):
            for rg in range(1, 8):
                A(f"v_add_f32 v{12+q}, v{12+q}, v{12+4*rg+q}")
        for q in range(4):
            self.bf16r(12 + q, 12 + q)
        A("v_mul_f32 v12, v12, v13")
        A("v_mul_f32 v14, v14, v15")
        A("v_cvt_pk_bf16_f32 v12, v12, v12")
        A("v_cvt_pk_bf16_f32 v14, v14, v14")
        A("v_cndmask_b32 v12, 0, v12, vcc")
        A("v_cndmask_b32 v14, 0, v14, vcc")
        A(f"ds_write_b16 v8, v12 offset:{L_HB}")
        A(f"ds_write_b16 v8, v14 offset:{L_HB+256}")
        A("s_waitcnt lgkmcnt(0)")
        A(f"ds_read_b128 v[12:15], v9 offset:{L_HB}")
        A(f"ds_read_b128 v[16:19], v9 offset:{L_HB+64}")
        A("s_waitcnt lgkmcnt(0)")
        for s in range(2):
            for t in range(5):
                d = 20 + 4 * t
                w = WDR + (t * 2 + s) * 4
                c = "0" if s == 0 else f"v[{d}:{d+3}]"
                A(f"v_mfma_f32_16x16x32_bf16 v[{d}:{d+3}], v[{w}:{w+3}], v[{12+4*s}:{15+4*s}], {c}")
        self.nop(8)
        for i in range(20):
            A(f"v_min_u32 v{20+i}, -2, v{20+i}")
        A("s_mov_b64 exec, s[66:67]")
        for t in range(5):
            A(f"buffer_store_dwordx4 v[{20+4*t}:{23+4*t}], v5, s[56:59], s68 offen offset:{64*t} sc1")
        A("s_mov_b64 exec, -1")
        self.stamp(5)
        A("s_lshr_b32 s64, s61, 2")
        A("s_and_b32 s65, s61, 1")
        A("s_sub_u32 s64, s64, s62")
        A("s_or_b32 s64, s64, s65")
        A("s_cmp_eq_u32 s64, 0")
        A("s_cselect_b32 s63, 1, 0")
        A("v_lshrrev_b32 v10, 5, v0")
        A("v_and_b32 v11, 31, v0")
        A("s_bfe_u32 s64, s61, 0x10001")
        A("s_lshl_b32 s65, s62, 1")
        A("s_add_u32 s65, s65, s64")
        A("s_mul_i32 s65, s65, 12288")
        A("v_min_u32 v40, 19, v11")
        A("v_mul_u32_u24 v41, 384, v10")
        A("v_lshl_add_u32 v41, v40, 4, v41")
        A("v_add_u32 v41, s65, v41")
        A("s_mul_i32 s64, s64, 1280")
        A("s_mul_i32 s65, s62, 160")
        A("s_add_u32 s64, s64, s65")
        A("v_lshlrev_b32 v42, 3, v40")
        A("v_add_u32 v42, s64, v42")

        def poll32(label, base):
            A(f"s_mov_b32 s64, {base}")
            A(f"s_mov_b32 s65, {base+4608}")
            A(f"s_mov_b32 s70, {base+9216}")
            A(f"{label}:")
            for kk in range(16):
                so = ("s64", "s65", "s70")[kk // 6]
                A(f"buffer_load_dwordx4 v[{48+4*kk}:{51+4*kk}], v41, s[56:59], {so} offen offset:{768*(kk%6)} sc1")
            A("s_waitcnt vmcnt(0)")
            A("v_max3_u32 v43, v48, v49, v50")
            for i in range(51, 111, 2):
                A(f"v_max3_u32 v43, v43, v{i}, v{i+1}")
            A("v_max_u32 v43, v43, v111")
            A("v_cmp_eq_u32 vcc, -1, v43")
            A(f"s_cbranch_vccz {label}_ok")
            A("s_sub_u32 s98, s98, 1")
            A(f"s_cbranch_scc0 {label}")
            A(f"{label}_ok:")
            for lvl in (32, 16, 8, 4):
                for i in range(lvl):
                    A(f"v_add_f32 v{48+i}, v{48+i}, v{48+lvl+i}")
            for k in range(4):
                A(f"v_mov_b32 v{44+k}, v{48+k}")
            self.nop(1)
            for k in range(4):
                A(f"v_permlane32_swap_b32 v{44+k}, v{48+k}")
            self.nop(1)
            for k in range(4):
                A(f"v_add_f32 v{44+k}, v{44+k}, v{48+k}")

        A("s_cmp_eq_u32 s63, 0")
        A("s_cbranch_scc1 L_noG")
        A("buffer_load_dwordx2 v[112:113], v42, s[28:31], 0 offen")
        poll32("L_pollG", WS_G)
        for k in range(4):
            self.bf16r(44 + k, 44 + k)
        for k in range(4):
            A(f"v_mul_f32 v{48+k}, {0xBFB8AA3B:#x}, v{44+k}")
        for k in range(4):
            A(f"v_exp_f32 v{48+k}, v{48+k}")
        for k in range(4):
            A(f"v_add_f32 v{48+k}, 1.0, v{48+k}")
        for k in range(4):
            A(f"v_rcp_f32 v{48+k}, v{48+k}")
        for k in range(4):
            A(f"v_mul_f32 v{116+k}, v{44+k}, v{48+k}")
        for k in range(4):
            self.bf16r(116 + k, 116 + k)
        A("v_lshlrev_b32 v120, 16, v112")
        A("v_and_b32 v121, 0xffff0000, v112")
        A("v_lshlrev_b32 v122, 16, v113")
        A("v_and_b32 v123, 0xffff0000, v113")
        A("L_noG:")
        self.stamp(6)
        A("s_mul_i32 s64, s61, 5120")
        A(f"s_add_u32 s64, s64, {WS_OP:#x}")
        A("v_mul_u32_u24 v6, 640, v10")
        A("v_lshl_add_u32 v6, v11, 4, v6")
        A("v_add_u32 v6, s64, v6")
        A("v_and_b32 v7, 7, v0")
        A("v_xor_b32 v7, v7, v10")
        A("v_mul_u32_u24 v7, 640, v7")
        A("v_add_u32 v7, s64, v7")
        A("v_lshlrev_b32 v8, 4, v11")
        A("v_lshlrev_b32 v40, 3, v11")
        A("v_lshl_add_u32 v40, v10, 8, v40")
        A(f"s_mov_b32 s71, {LOG2E:#x}")
        A("s_mov_b32 s64, 0")
        A("s_mov_b32 s65, 1")
        A("v_mov_b32 v1, 0")
        A("s_setprio 0")
        A("L_waitS:")
        A(f"ds_read_b32 v12, v1 offset:{L_CNT}")
        A("s_waitcnt lgkmcnt(0)")
        A("v_readfirstlane_b32 s70, v12")
        A("s_cmp_ge_u32 s70, 4")
        A("s_cbranch_scc1 L_gotS")
        A("s_sleep 1")
        A("s_sub_u32 s99, s99, 1")
        A("s_cbranch_scc0 L_waitS")
        A("L_gotS:")
        A("s_setprio 3")
        self.stamp(7)
        A(f"ds_read_b128 v[12:15], v1 offset:{L_ML}")
        A(f"ds_read_b128 v[16:19], v1 offset:{L_ML+16}")
        for w in range(4):
            A(f"ds_read_b128 v[{20+4*w}:{23+4*w}], v8 offset:{L_OP+512*w}")
        A("s_waitcnt lgkmcnt(4)")
        A("v_max3_f32 v36, v12, v14, v16")
        A("v_max_f32 v36, v36, v18")
        for w in range(4):
            A(f"v_sub_f32 v{12+2*w}, v{12+2*w}, v36")
        for w in range(4):
            A(f"v_mul_f32 v{12+2*w}, s71, v{12+2*w}")
        for w in range(4):
            A(f"v_exp_f32 v{12+2*w}, v{12+2*w}")
        self.nop(1)
        A("v_mul_f32 v37, v12, v13")
        for w in range(1, 4):
            A(f"v_fmac_f32 v37, v{12+2*w}, v{13+2*w}")
        A("s_waitcnt lgkmcnt(0)")
        for k in range(4):
            A(f"v_mul_f32 v{20+k}, v12, v{20+k}")
        for w in range(1, 4):
            for k in range(4):
                A(f"v_fmac_f32 v{20+k}, v{12+2*w}, v{20+4*w+k}")
        A("v_cndmask_b32 v20, v20, v36, s[64:65]")
        A("v_cndmask_b32 v21, v21, v37, s[64:65]")
        for k in range(4):
            A(f"v_min_u32 v{20+k}, -2, v{20+k}")
        self.setexec(0xffffffff, 1)
        A("buffer_store_dwordx4 v[20:23], v4, s[56:59], 0 offen sc1")
        A("s_mov_b64 exec, -1")
        self.stamp(8)
        A("L_pollO:")
        A("buffer_load_dwordx2 v[28:29], v7, s[56:59], 0 offen offset:512 sc1")
        for kk in range(4):
            A(f"buffer_load_dwordx4 v[{48+4*kk}:{51+4*kk}], v6, s[56:59], 0 offen offset:{1280*kk} sc1")
        A("s_waitcnt vmcnt(0)")
        A("v_max3_u32 v43, v28, v29, v48")
        for i in range(49, 63, 2):
            A(f"v_max3_u32 v43, v43, v{i}, v{i+1}")
        A("v_max_u32 v43, v43, v63")
        A("v_cmp_eq_u32 vcc, -1, v43")
        A("s_cbranch_vccz L_pollO_ok")
        A("s_sub_u32 s98, s98, 1")
        A("s_cbranch_scc0 L_pollO")
        A("L_pollO_ok:")
        self.stamp(9)
        A("v_max_f32_dpp v30, v28, v28 quad_perm:[1,0,3,2] row_mask:0xf bank_mask:0xf")
        self.nop(2)
        A("v_max_f32_dpp v30, v30, v30 quad_perm:[2,3,0,1] row_mask:0xf bank_mask:0xf")
        A("v_sub_f32 v30, v28, v30")
        A("v_mul_f32 v30, s71, v30")
        A("v_exp_f32 v30, v30")
        self.nop(1)
        A("v_mul_f32 v31, v30, v29")
        self.nop(2)
        A("v_add_f32_dpp v31, v31, v31 quad_perm:[1,0,3,2] row_mask:0xf bank_mask:0xf")
        self.nop(2)
        A("v_add_f32_dpp v31, v31, v31 quad_perm:[2,3,0,1] row_mask:0xf bank_mask:0xf")
        A("v_rcp_f32 v31, v31")
        self.nop(1)
        A("v_mul_f32 v30, v30, v31")
        self.nop(2)
        for b in range(2):
            for k in range(4):
                A(f"v_mul_f32_dpp v{12+4*b+k}, v30, v{48+8*b+k} row_newbcast:{4*b} row_mask:0xf bank_mask:0xf")
            for k in range(4):
                A(f"v_fmac_f32_dpp v{12+4*b+k}, v30, v{52+8*b+k} row_newbcast:{4*b+2} row_mask:0xf bank_mask:0xf")
        self.nop(1)
        for k in range(4):
            A(f"v_permlane32_swap_b32 v{12+k}, v{16+k}")
        self.nop(1)
        for k in range(4):
            A(f"v_add_f32 v{12+k}, v{12+k}, v{16+k}")
        A("v_cvt_pk_bf16_f32 v12, v12, v13")
        A("v_cvt_pk_bf16_f32 v13, v14, v15")
        A(f"ds_write_b64 v40, v[12:13] offset:{L_HB}")
        A("s_waitcnt lgkmcnt(0)")
        for s in range(4):
            A(f"ds_read_b128 v[{12+4*s}:{15+4*s}], v9 offset:{L_HB+64*s}")
        for s in range(4):
            A(f"s_waitcnt lgkmcnt({3-s})")
            for t in range(5):
                d = 48 + 4 * t
                w = WOR + (t * 4 + s) * 4
                c = "0" if s == 0 else f"v[{d}:{d+3}]"
                A(f"v_mfma_f32_16x16x32_bf16 v[{d}:{d+3}], v[{w}:{w+3}], v[{12+4*s}:{15+4*s}], {c}")
        self.nop(4)
        A("s_mov_b64 exec, s[66:67]")
        for t in range(5):
            for k in range(4):
                A(f"v_min_u32 v{48+4*t+k}, -2, v{48+4*t+k}")
            A(f"buffer_store_dwordx4 v[{48+4*t}:{51+4*t}], v5, s[56:59], s69 offen offset:{64*t} sc1")
        A("s_mov_b64 exec, -1")
        self.stamp(10)
        A("s_cmp_eq_u32 s63, 0")
        A("s_cbranch_scc1 L_auxdone")
        poll32("L_pollY", WS_Y)
        self.stamp(11)
        for k in range(4):
            self.bf16r(44 + k, 44 + k)
        for k in range(4):
            A(f"v_mul_f32 v{44+k}, v{44+k}, v{116+k}")
        for k in range(4):
            self.bf16r(44 + k, 44 + k)
        for k in range(4):
            A(f"v_add_f32 v{44+k}, v{44+k}, v{120+k}")
        A("v_cvt_pk_bf16_f32 v44, v44, v45")
        A("v_cvt_pk_bf16_f32 v45, v46, v47")
        self.setexec(0xfffff, 0)
        A("buffer_store_dwordx2 v[44:45], v42, s[48:51], 0 offen")
        A("L_auxdone:")
        if self.stamps:
            A("s_waitcnt vmcnt(0)")
        self.stamp(12)
        self.dump_stamps(13)

    def text(self):
        self.build()
        out = [HEADER.rstrip("\n")]
        out.append(f"; @launch grid=(256,1,1) block=(320,1,1) lds={L_END}")
        out.append('.amdgcn_target "amdgcn-amd-amdhsa--gfx950"')
        out += [".text", f".globl {KNAME}", ".p2align 8", f".type {KNAME},@function", f"{KNAME}:"]
        out += self.L
        out += ['.section .rodata,"a"', ".p2align 6", f".amdhsa_kernel {KNAME}",
                "  .amdhsa_next_free_vgpr 256", "  .amdhsa_next_free_sgpr 102", "  .amdhsa_accum_offset 256",
                "  .amdhsa_group_segment_fixed_size 0", "  .amdhsa_kernarg_size 96", "  .amdhsa_user_sgpr_count 2",
                "  .amdhsa_user_sgpr_kernarg_segment_ptr 1", "  .amdhsa_system_sgpr_workgroup_id_x 1",
                "  .amdhsa_float_denorm_mode_32 3",
                ".end_amdhsa_kernel"]
        return "\n".join(out) + "\n"


if __name__ == "__main__":
    import argparse, ast
    ap = argparse.ArgumentParser()
    ap.add_argument("out")
    ap.add_argument("opts", nargs="*")
    a = ap.parse_args()
    kw = {}
    for o in a.opts:
        k, v = o.split("=", 1)
        try:
            v = ast.literal_eval(v)
        except Exception:
            pass
        kw[k] = v
    t = Gen(**kw).text()
    open(a.out, "w").write(t)
    sys.path.insert(0, "gen")
    import lint
    r = lint.lint(t)
    print("\n".join(r) if r else "lint clean")
```
